```python
import torch

def _softmax(x, axis=-1):
    return torch.softmax(x, dim=axis)
def _gelu(x):
    return torch.nn.functional.gelu(x, approximate="tanh")
def _silu(x):
    return torch.nn.functional.silu(x)
def _sigmoid(x):
    return torch.sigmoid(x)
def _layernorm(x, axis=-1, eps=1e-5):
    m = x.mean(dim=axis, keepdim=True)
    v = x.var(dim=axis, keepdim=True, unbiased=False)
    return (x - m) / torch.sqrt(v + eps)
def _scatter_add(tgt, idx, src, axis=0):
    return tgt.clone().index_add_(axis, idx, src)
def _segment_sum(src, seg, n):
    out = torch.zeros((n,) + src.shape[1:], dtype=src.dtype)
    return out.index_add_(0, seg, src)
def _pad(x, pw):
    flat = tuple(v for pair in reversed(pw) for v in pair)
    return torch.nn.functional.pad(x, flat)

kernel_name = 'gated_mix__spectral_fnet__glu_gated_glu__prompt'

def setup_inputs():

    _w = (lambda a: (lambda t: t.to(torch.bfloat16) if t.is_floating_point() else t)(torch.as_tensor(a)))
    def _A_setup():
        B, S, D = 1, 2048, 640
        ns = torch.arange(S)[:, None] * torch.arange(S)[None, :]
        nd = torch.arange(D)[:, None] * torch.arange(D)[None, :]
        Ws_re = torch.cos(-2.0 * torch.pi * ns / S).to(float)
        Ws_im = torch.sin(-2.0 * torch.pi * ns / S).to(float)
        Wd_re = torch.cos(-2.0 * torch.pi * nd / D).to(float)
        Wd_im = torch.sin(-2.0 * torch.pi * nd / D).to(float)
        return {
            "x": _w((lambda *s: torch.randn(*s, dtype=torch.bfloat16) * 0.05)(B, S, D)),
            "dft_seq_re": _w(Ws_re),
            "dft_seq_im": _w(Ws_im),
            "dft_hid_re": _w(Wd_re),
            "dft_hid_im": _w(Wd_im),
        }
    _A_in = _A_setup()

    def _B_setup():
        B, S, D, F = 1, 2048, 640, 1536
        return {
            "x": _w((lambda *s: torch.randn(*s, dtype=torch.bfloat16) * 0.05)(B, S, D)),
            "w_gate": _w((lambda *s: torch.randn(*s, dtype=torch.bfloat16) * 1.6)(D, F)),
            "w_up": _w((lambda *s: torch.randn(*s, dtype=torch.bfloat16) * 0.8)(D, F)),
            "w_down": _w((lambda *s: torch.randn(*s, dtype=torch.bfloat16) * 0.8)(F, D)),
        }
    _B_in = _B_setup()

    return {
        "A_x": _A_in["x"],
        "A_dft_seq_re": _A_in["dft_seq_re"],
        "A_dft_seq_im": _A_in["dft_seq_im"],
        "A_dft_hid_re": _A_in["dft_hid_re"],
        "A_dft_hid_im": _A_in["dft_hid_im"],
        "B_x": _B_in["x"],
        "B_w_gate": _B_in["w_gate"],
        "B_w_up": _B_in["w_up"],
        "B_w_down": _B_in["w_down"],
        "gate_w": _w((lambda *s: torch.randn(*s, dtype=torch.bfloat16) * 0.05)(640) * 16.0),
    }

def reference(A_x, A_dft_seq_re, A_dft_seq_im, A_dft_hid_re, A_dft_hid_im, B_x, B_w_gate, B_w_up, B_w_down, gate_w):
    def _A_ref(x, dft_seq_re, dft_seq_im, dft_hid_re, dft_hid_im):
        a = torch.einsum("bsd,ed->bse", x, dft_hid_re)
        b = torch.einsum("bsd,ed->bse", x, dft_hid_im)
        y = torch.einsum("ts,bse->bte", dft_seq_re, a) - torch.einsum("ts,bse->bte", dft_seq_im, b)
        return y

    def _B_ref(x, w_gate, w_up, w_down):
        g = torch.einsum("bsd,df->bsf", x, w_gate)
        u = torch.einsum("bsd,df->bsf", x, w_up)
        h = _sigmoid(g) * u
        return torch.einsum("bsf,fd->bsd", h, w_down)

    x = A_x
    g = _sigmoid((x * gate_w).sum(-1, keepdims=True))
    a = _A_ref(x, A_dft_seq_re, A_dft_seq_im, A_dft_hid_re, A_dft_hid_im)
    b = _B_ref(x, B_w_gate, B_w_up, B_w_down)
    return g * a + (1 - g) * b
```

```python
import sys

NAME = "gated_mix__spectral_fnet__glu_gated_glu__prompt"
WS_APACK = 0
WS_BPACK = 0xB00000
WS_G = 0xF00000
WS_SIZE = 0xF04000
OOB = 0x7FFFFFF0

CFG = dict(
    pq_R=4,
    pq_n0=2,
    gu_n0=4,
    k2_D=6,
    gu_map=1,
    k2_map=1,
    stamps=0,
)


class Asm:
    def __init__(self):
        self.l = []

    def __call__(self, s):
        for x in s.split("\n"):
            x = x.strip()
            if x:
                self.l.append(x)

    def label(self, s):
        self.l.append(s + ":")

    def text(self):
        out = []
        for i, x in enumerate(self.l):
            if out and x.endswith(" lds") and " m0," in out[-1]:
                out.append("s_nop 0")
            out.append(x)
        res = []
        for x in out:
            if x.endswith(":") or x.startswith(".") or x.startswith(";"):
                res.append(x)
            else:
                res.append("  " + x)
        return "\n".join(res) + "\n"


class VM:
    def __init__(self):
        self.ops = []

    def issue(self, tag):
        self.ops.append(tag)

    def need(self, tags):
        last = -1
        for i, t in enumerate(self.ops):
            if t in tags:
                last = i
        if last < 0:
            return None
        n = len(self.ops) - 1 - last
        assert n <= 63, n
        return n


def srd(a, d, lo, hi, size):
    a(f"s_mov_b32 s{d}, s{lo}")
    a(f"s_mov_b32 s{d+1}, s{hi}")
    a(f"s_mov_b32 s{d+2}, {size}")
    a(f"s_mov_b32 s{d+3}, 0x20000")


def interleave(a, mfmas, n0, sync, fillers, last=None):
    n = len(mfmas)
    if last is None:
        last = n - 1
    gaps = list(range(n0, last + 1))
    per = {g: [] for g in range(n + 1)}
    nf = len(fillers)
    ng = len(gaps)
    for i, f in enumerate(fillers):
        g = gaps[min(ng - 1, (i * ng) // max(nf, 1))]
        per[g].append(f)
    for i in range(n):
        if i == n0:
            for s in sync:
                a(s)
        for f in per[i]:
            a(f)
        a(mfmas[i])
    if n0 >= n:
        for s in sync:
            a(s)
        for f in fillers:
            a(f)


S_W = 4
S_XCD = 5
S_IDX = 6
S_U = 7
P_X, P_CR, P_CI, P_DR, P_DI, P_BX, P_WG, P_WU = 16, 18, 20, 22, 24, 26, 28, 30
P_WD, P_GW, P_WS = 32, 34, 36
R_X, R_A, R_WG, R_WU, R_WS, R_SIDE, R_GW = 40, 44, 48, 52, 56, 60, 64
S_WB = 68
S_KA, S_KB = 69, 70
S_T0, S_T1, S_T2, S_T3, S_T4, S_T5 = 72, 73, 74, 75, 76, 77
S_KIND = 78
S_SB, S_SK = 79, 80
S_O0, S_O1 = 81, 82
S_ST = 84

V_LANE = 1


def side_part1(a, vm, tmp, side_lds, tagp):
    X, G, F, T = tmp, tmp + 12, tmp + 24, tmp + 40
    a(f"s_sub_u32 s{S_T0}, 255, s2")
    a(f"s_lshl_b32 s{S_U}, s{S_T0}, 2")
    a(f"s_add_u32 s{S_U}, s{S_U}, s{S_W}")
    a(f"v_and_b32 v{T}, 31, v{V_LANE}")
    a(f"v_lshrrev_b32 v{T+1}, 5, v{V_LANE}")
    a(f"s_lshl_b32 s{S_T0}, s{S_U}, 1")
    a(f"v_add_u32 v{T+1}, s{S_T0}, v{T+1}")
    a(f"v_mul_u32_u24 v{T+2}, 1280, v{T+1}")
    a(f"v_lshlrev_b32 v{T+3}, 4, v{T}")
    a(f"v_add_u32 v{T+2}, v{T+2}, v{T+3}")
    a(f"v_mov_b32 v{T+4}, {OOB}")
    a(f"v_cmp_gt_u32 vcc, 16, v{T}")
    a("s_nop 1")
    a(f"v_cndmask_b32 v{T+4}, v{T+4}, v{T+2}, vcc")
    a(f"buffer_load_dwordx4 v[{X}:{X+3}], v{T+2}, s[{R_X}:{R_X+3}], 0 offen"); vm.issue(tagp)
    a(f"buffer_load_dwordx4 v[{X+4}:{X+7}], v{T+2}, s[{R_X}:{R_X+3}], 0 offen offset:512"); vm.issue(tagp)
    a(f"buffer_load_dwordx4 v[{X+8}:{X+11}], v{T+4}, s[{R_X}:{R_X+3}], 0 offen offset:1024"); vm.issue(tagp)
    a(f"buffer_load_dwordx4 v[{G}:{G+3}], v{T+3}, s[{R_GW}:{R_GW+3}], 0 offen"); vm.issue(tagp)
    a(f"buffer_load_dwordx4 v[{G+4}:{G+7}], v{T+3}, s[{R_GW}:{R_GW+3}], 0 offen offset:512"); vm.issue(tagp)
    a(f"buffer_load_dwordx4 v[{G+8}:{G+11}], v{T+3}, s[{R_GW}:{R_GW+3}], 0 offen offset:1024"); vm.issue(tagp)
    lab = f"Ls{tagp}"
    a(f"s_cmp_lt_u32 s{S_U}, 400")
    a(f"s_cbranch_scc0 {lab}_notD")
    a(f"s_mov_b32 s{S_KIND}, 0")
    a(f"s_cmp_ge_u32 s{S_U}, 200")
    a(f"s_cselect_b32 s{S_T0}, 200, 0")
    a(f"s_cselect_b32 s{S_T1}, 20, 0")
    a(f"s_cselect_b32 s{R_SIDE}, s{P_DI}, s{P_DR}")
    a(f"s_cselect_b32 s{R_SIDE+1}, s{P_DI+1}, s{P_DR+1}")
    a(f"s_mov_b32 s{R_SIDE+2}, 819200")
    a(f"s_mov_b32 s{R_SIDE+3}, 0x20000")
    a(f"s_sub_u32 s{S_T0}, s{S_U}, s{S_T0}")
    a(f"s_mul_i32 s{S_SB}, s{S_T0}, 205")
    a(f"s_lshr_b32 s{S_SB}, s{S_SB}, 10")
    a(f"s_mul_i32 s{S_T2}, s{S_SB}, 5")
    a(f"s_sub_u32 s{S_T2}, s{S_T0}, s{S_T2}")
    a(f"s_lshl_b32 s{S_SK}, s{S_T2}, 2")
    a(f"s_add_u32 s{S_SK}, s{S_SK}, s{S_T1}")
    a(f"v_and_b32 v{T+5}, 15, v{V_LANE}")
    a(f"v_mul_u32_u24 v{T+5}, 1280, v{T+5}")
    a(f"v_lshrrev_b32 v{T+6}, 4, v{V_LANE}")
    a(f"v_lshl_add_u32 v{T+5}, v{T+6}, 3, v{T+5}")
    a(f"s_mul_i32 s{S_T3}, s{S_SB}, {16*1280}")
    a(f"s_lshl_b32 s{S_T2}, s{S_T2}, 8")
    a(f"s_add_u32 s{S_T3}, s{S_T3}, s{S_T2}")
    for kk in range(4):
        for h in range(2):
            r = F + kk * 4 + h * 2
            a(f"buffer_load_dwordx2 v[{r}:{r+1}], v{T+5}, s[{R_SIDE}:{R_SIDE+3}], s{S_T3} offen offset:{kk*64+h*32}")
    a(f"s_branch {lab}_done1")
    a.label(f"{lab}_notD")
    a(f"s_cmp_lt_u32 s{S_U}, 880")
    a(f"s_cselect_b32 s{S_KIND}, 1, 2")
    a(f"s_cselect_b32 s{R_SIDE+2}, 1966080, 0")
    a(f"s_mov_b32 s{R_SIDE}, s{P_WD}")
    a(f"s_mov_b32 s{R_SIDE+1}, s{P_WD+1}")
    a(f"s_mov_b32 s{R_SIDE+3}, 0x20000")
    a(f"s_sub_u32 s{S_T0}, s{S_U}, 400")
    a(f"s_mul_i32 s{S_SK}, s{S_T0}, 205")
    a(f"s_lshr_b32 s{S_SK}, s{S_SK}, 11")
    a(f"s_mul_i32 s{S_T2}, s{S_SK}, 10")
    a(f"s_sub_u32 s{S_SB}, s{S_T0}, s{S_T2}")
    a(f"v_lshrrev_b32 v{T+5}, 3, v{V_LANE}")
    a(f"v_mul_u32_u24 v{T+5}, 1280, v{T+5}")
    a(f"v_and_b32 v{T+6}, 7, v{V_LANE}")
    a(f"v_lshl_add_u32 v{T+5}, v{T+6}, 4, v{T+5}")
    a(f"s_mul_i32 s{S_T3}, s{S_SK}, {32*1280}")
    a(f"s_lshl_b32 s{S_T2}, s{S_SB}, 7")
    a(f"s_add_u32 s{S_T3}, s{S_T3}, s{S_T2}")
    a(f"s_lshl_b32 s{S_T4}, s{S_W}, 12")
    for i in range(4):
        a(f"s_add_u32 m0, s{S_T4}, {side_lds + i*1024}")
        a("s_nop 0")
        a(f"buffer_load_dwordx4 v{T+5}, s[{R_SIDE}:{R_SIDE+3}], s{S_T3} offen lds")
        a(f"s_add_u32 s{S_T3}, s{S_T3}, {8*1280}")
    a(f"v_mov_b32 v{T+6}, {OOB}")
    for i in range(4):
        a(f"buffer_load_dword v{F+i}, v{T+6}, s[{R_SIDE}:{R_SIDE+3}], 0 offen")
    a.label(f"{lab}_done1")
    for i in range(8):
        vm.issue(tagp)


def side_part2(a, vm, tmp, side_lds, tagp):
    X, G, F, T = tmp, tmp + 12, tmp + 24, tmp + 40
    lab = f"Ls{tagp}"
    n = vm.need([tagp])
    a(f"s_waitcnt vmcnt({n})")
    a(f"v_lshlrev_b32 v{T+7}, 4, v{V_LANE}")
    a(f"s_cmp_eq_u32 s{S_KIND}, 0")
    a(f"s_cbranch_scc0 {lab}_notD2")
    a(f"s_mul_i32 s{S_T0}, s{S_SB}, 205")
    a(f"s_lshr_b32 s{S_T0}, s{S_T0}, 10")
    a(f"s_mul_i32 s{S_T1}, s{S_T0}, 5")
    a(f"s_sub_u32 s{S_T1}, s{S_SB}, s{S_T1}")
    a(f"s_mul_i32 s{S_T0}, s{S_T0}, 88")
    a(f"s_add_u32 s{S_T0}, s{S_T0}, s{S_SK}")
    a(f"s_mul_i32 s{S_T0}, s{S_T0}, 5")
    a(f"s_add_u32 s{S_T0}, s{S_T0}, s{S_T1}")
    a(f"s_lshl_b32 s{S_T0}, s{S_T0}, 10")
    a(f"s_add_u32 s{S_T0}, s{S_T0}, {WS_BPACK}")
    for kk in range(4):
        a(f"buffer_store_dwordx4 v[{F+kk*4}:{F+kk*4+3}], v{T+7}, s[{R_WS}:{R_WS+3}], s{S_T0} offen")
        a(f"s_add_u32 s{S_T0}, s{S_T0}, 5120")
    a(f"s_branch {lab}_done2")
    a.label(f"{lab}_notD2")
    a(f"v_lshrrev_b32 v{T+5}, 2, v{V_LANE}")
    a(f"v_lshlrev_b32 v{T+5}, 7, v{T+5}")
    a(f"v_and_b32 v{T+6}, 3, v{V_LANE}")
    a(f"v_lshl_add_u32 v{T+5}, v{T+6}, 3, v{T+5}")
    a(f"s_lshl_b32 s{S_T4}, s{S_W}, 12")
    a(f"s_add_u32 s{S_T4}, s{S_T4}, {side_lds}")
    a(f"v_add_u32 v{T+5}, s{S_T4}, v{T+5}")
    for bb in range(4):
        for h in range(2):
            r = F + bb * 4 + h * 2
            a(f"ds_read_b64_tr_b16 v[{r}:{r+1}], v{T+5} offset:{h*2048+bb*32}")
    a(f"s_cmp_eq_u32 s{S_KIND}, 1")
    a(f"s_mov_b32 s{S_T5}, {OOB}")
    a(f"s_cselect_b32 s{S_T5}, {WS_BPACK}, s{S_T5}")
    a(f"s_add_u32 s{S_SK}, s{S_SK}, 40")
    a(f"s_lshl_b32 s{S_SB}, s{S_SB}, 2")
    a("s_waitcnt lgkmcnt(0)")
    for bb in range(4):
        a(f"s_add_u32 s{S_T2}, s{S_SB}, {bb}")
        a(f"s_mul_i32 s{S_T0}, s{S_T2}, 205")
        a(f"s_lshr_b32 s{S_T0}, s{S_T0}, 10")
        a(f"s_mul_i32 s{S_T1}, s{S_T0}, 5")
        a(f"s_sub_u32 s{S_T1}, s{S_T2}, s{S_T1}")
        a(f"s_mul_i32 s{S_T0}, s{S_T0}, 88")
        a(f"s_add_u32 s{S_T0}, s{S_T0}, s{S_SK}")
        a(f"s_mul_i32 s{S_T0}, s{S_T0}, 5")
        a(f"s_add_u32 s{S_T0}, s{S_T0}, s{S_T1}")
        a(f"s_lshl_b32 s{S_T0}, s{S_T0}, 10")
        a(f"s_add_u32 s{S_T0}, s{S_T0}, s{S_T5}")
        a(f"buffer_store_dwordx4 v[{F+bb*4}:{F+bb*4+3}], v{T+7}, s[{R_WS}:{R_WS+3}], s{S_T0} offen")
    a.label(f"{lab}_done2")
    for i in range(4):
        vm.issue(tagp + "st")
    acc = T + 8
    t0, t1, t2, t3 = T + 9, T + 10, T + 11, T + 12
    a(f"v_mov_b32 v{acc}, 0")
    for i in range(12):
        a(f"v_lshlrev_b32 v{t0}, 16, v{X+i}")
        a(f"v_and_b32 v{t1}, 0xffff0000, v{X+i}")
        a(f"v_lshlrev_b32 v{t2}, 16, v{G+i}")
        a(f"v_and_b32 v{t3}, 0xffff0000, v{G+i}")
        a(f"v_mul_f32 v{t0}, v{t0}, v{t2}")
        a(f"v_mul_f32 v{t1}, v{t1}, v{t3}")
        a(f"v_cvt_pk_bf16_f32 v{t0}, v{t0}, v{t1}")
        a(f"v_lshlrev_b32 v{t1}, 16, v{t0}")
        a(f"v_and_b32 v{t0}, 0xffff0000, v{t0}")
        a(f"v_add_f32 v{acc}, v{acc}, v{t1}")
        a(f"v_add_f32 v{acc}, v{acc}, v{t0}")
    for dpp in ("quad_perm:[1,0,3,2]", "quad_perm:[2,3,0,1]", "row_half_mirror", "row_mirror"):
        a("s_nop 1")
        a(f"v_add_f32_dpp v{acc}, v{acc}, v{acc} {dpp} row_mask:0xf bank_mask:0xf")
    a(f"ds_swizzle_b32 v{t0}, v{acc} offset:0x401F")
    a("s_waitcnt lgkmcnt(0)")
    a(f"v_add_f32 v{acc}, v{acc}, v{t0}")
    a(f"v_cvt_pk_bf16_f32 v{acc}, v{acc}, v{acc}")
    a(f"v_and_b32 v{acc}, 0xffff0000, v{acc}")
    a(f"v_mul_f32 v{acc}, 0xbfb8aa3b, v{acc}")
    a(f"v_exp_f32 v{acc}, v{acc}")
    a("s_nop 0")
    a(f"v_add_f32 v{acc}, 1.0, v{acc}")
    a(f"v_rcp_f32 v{acc}, v{acc}")
    a("s_nop 0")
    g0 = t2 if t2 % 2 == 0 else t3
    assert g0 % 2 == 0
    a(f"v_cvt_pk_bf16_f32 v{acc}, v{acc}, v{acc}")
    a(f"v_and_b32 v{g0}, 0xffff0000, v{acc}")
    a(f"v_sub_f32 v{acc}, 1.0, v{g0}")
    a(f"v_cvt_pk_bf16_f32 v{acc}, v{acc}, v{acc}")
    a(f"v_and_b32 v{g0+1}, 0xffff0000, v{acc}")
    a(f"v_lshlrev_b32 v{t0}, 3, v{T+1}")
    a(f"v_add_u32 v{t0}, {WS_G}, v{t0}")
    a(f"v_mov_b32 v{t1}, {OOB}")
    a(f"v_cmp_eq_u32 vcc, 0, v{T}")
    a("s_nop 1")
    a(f"v_cndmask_b32 v{t1}, v{t1}, v{t0}, vcc")
    a(f"buffer_store_dwordx2 v[{g0}:{g0+1}], v{t1}, s[{R_WS}:{R_WS+3}], 0 offen")
    vm.issue(tagp + "st")
    a("s_nop 1")


def stamp(a, idx):
    if CFG["stamps"]:
        a(f"s_memtime s[{S_ST+2*idx}:{S_ST+2*idx+1}]")


def stamps_out(a, n, kernel_slot):
    if not CFG["stamps"]:
        return
    a("s_waitcnt lgkmcnt(0) vmcnt(0)")
    a(f"s_lshl_b32 s{S_T0}, s2, 2")
    a(f"s_add_u32 s{S_T0}, s{S_T0}, s{S_W}")
    a(f"s_lshl_b32 s{S_T0}, s{S_T0}, 6")
    a(f"s_add_u32 s{S_T0}, s{S_T0}, {0x1000000 + kernel_slot*0x10000}")
    a(f"s_mov_b32 s{R_WS+2}, 0x2000000")
    a(f"v_mov_b32 v2, 0")
    a(f"v_cmp_eq_u32 vcc, 0, v{V_LANE}")
    a(f"s_and_saveexec_b64 s[{S_T2}:{S_T3}], vcc")
    for i in range(n):
        a(f"v_mov_b32 v3, s{S_ST+2*i}")
        a(f"buffer_store_dword v3, v2, s[{R_WS}:{R_WS+3}], s{S_T0} offen offset:{4*i}")
        a("s_nop 1")
    a(f"s_getreg_b32 s{S_T4}, hwreg(HW_REG_XCC_ID)")
    a(f"v_mov_b32 v3, s{S_T4}")
    a(f"buffer_store_dword v3, v2, s[{R_WS}:{R_WS+3}], s{S_T0} offen offset:60")
    a(f"s_mov_b64 exec, s[{S_T2}:{S_T3}]")


def gen_pq(a):
    R = CFG["pq_R"]
    NST = 32
    SLOT = 32768
    side_lds = 4 * SLOT if R == 4 else (R - 1) * SLOT
    vm = VM()
    ACC = 32
    FR = 96
    V_AS = 2
    V_BS = 6
    NW = (R * SLOT + 65535) // 65536
    V_AR = 10
    V_BR = V_AR + 2 * NW
    assert V_BR + 4 * NW <= 30
    T = 30
    TMP = 160
    a.label("L_pq")
    a(f"s_sub_u32 s{S_T0}, s{S_IDX}, 12")
    a(f"s_mul_i32 s{S_T1}, s{S_T0}, 205")
    a(f"s_lshr_b32 s{S_T1}, s{S_T1}, 10")
    a(f"s_mul_i32 s{S_T2}, s{S_T1}, 5")
    a(f"s_sub_u32 s{S_T2}, s{S_T0}, s{S_T2}")
    a(f"s_lshr_b32 s{S_T3}, s{S_T1}, 1")
    a(f"s_and_b32 s{S_T1}, s{S_T1}, 1")
    a(f"s_lshl_b32 s{S_T4}, s{S_XCD}, 1")
    a(f"s_add_u32 s{S_T4}, s{S_T4}, s{S_T1}")
    a(f"s_cmp_eq_u32 s{S_T3}, 1")
    a(f"s_cselect_b32 s{R_A}, s{P_CI}, s{P_CR}")
    a(f"s_cselect_b32 s{R_A+1}, s{P_CI+1}, s{P_CR+1}")
    a(f"s_mov_b32 s{R_A+2}, 8388608")
    a(f"s_mov_b32 s{R_A+3}, 0x20000")
    a(f"s_lshl_b32 s{S_KA}, s{S_T4}, 19")
    a(f"s_lshl_b32 s{S_KB}, s{S_T2}, 8")
    a(f"s_lshr_b32 s{S_T0}, s{S_W}, 1")
    a(f"s_lshl_b32 s{S_T4}, s{S_T4}, 1")
    a(f"s_add_u32 s{S_T4}, s{S_T4}, s{S_T0}")
    a(f"s_mul_i32 s{S_T4}, s{S_T4}, 88")
    a(f"s_mul_i32 s{S_T3}, s{S_T3}, 20")
    a(f"s_add_u32 s{S_T4}, s{S_T4}, s{S_T3}")
    a(f"s_lshl_b32 s{S_T2}, s{S_T2}, 2")
    a(f"s_add_u32 s{S_T4}, s{S_T4}, s{S_T2}")
    a(f"s_and_b32 s{S_T1}, s{S_W}, 1")
    a(f"s_lshl_b32 s{S_T2}, s{S_T1}, 1")
    a(f"s_add_u32 s{S_T4}, s{S_T4}, s{S_T2}")
    a(f"s_lshl_b32 s{S_O0}, s{S_T4}, 12")
    a(f"s_add_u32 s{S_O1}, s{S_O0}, 4096")
    a(f"v_lshrrev_b32 v{T}, 3, v{V_LANE}")
    a(f"s_lshl_b32 s{S_T2}, s{S_W}, 3")
    a(f"v_add_u32 v{T}, s{S_T2}, v{T}")
    a(f"v_lshlrev_b32 v{T}, 12, v{T}")
    a(f"v_lshrrev_b32 v{T+1}, 4, v{V_LANE}")
    a(f"s_lshl_b32 s{S_T2}, s{S_T1}, 2")
    a(f"v_add_u32 v{T+1}, s{S_T2}, v{T+1}")
    a(f"v_and_b32 v{V_AS}, 7, v{V_LANE}")
    a(f"v_xor_b32 v{T+1}, v{T+1}, v{V_AS}")
    a(f"v_lshl_add_u32 v{V_AS}, v{T+1}, 4, v{T}")
    for i in range(1, 4):
        a(f"v_add_u32 v{V_AS+i}, {i*32*4096}, v{V_AS}")
    a(f"v_lshrrev_b32 v{T}, 4, v{V_LANE}")
    a(f"s_lshl_b32 s{S_T2}, s{S_W}, 2")
    a(f"v_add_u32 v{T+1}, s{S_T2}, v{T}")
    a(f"v_mul_u32_u24 v{V_BS}, 1280, v{T+1}")
    a(f"s_lshl_b32 s{S_T2}, s{S_T0}, 2")
    a(f"v_or_b32 v{T}, s{S_T2}, v{T}")
    a(f"v_bfe_u32 v{T+1}, v{V_LANE}, 1, 3")
    a(f"v_xor_b32 v{T}, v{T}, v{T+1}")
    a(f"v_lshl_add_u32 v{V_BS}, v{T}, 5, v{V_BS}")
    a(f"v_and_b32 v{T}, 1, v{V_LANE}")
    a(f"v_lshl_add_u32 v{V_BS}, v{T}, 4, v{V_BS}")
    for i in range(1, 4):
        a(f"v_add_u32 v{V_BS+i}, {i*16*1280}, v{V_BS}")
    a(f"v_and_b32 v{T}, 15, v{V_LANE}")
    a(f"s_lshl_b32 s{S_T2}, s{S_T0}, 6")
    a(f"v_add_u32 v{T}, s{S_T2}, v{T}")
    a(f"v_lshlrev_b32 v{T}, 7, v{T}")
    a(f"v_lshrrev_b32 v{T+1}, 4, v{V_LANE}")
    a(f"v_bfe_u32 v{V_AR}, v{V_LANE}, 1, 3")
    a(f"v_xor_b32 v{T+1}, v{T+1}, v{V_AR}")
    a(f"v_lshl_add_u32 v{V_AR}, v{T+1}, 4, v{T}")
    a(f"v_xor_b32 v{V_AR+1}, 64, v{V_AR}")
    for wdw in range(1, NW):
        a(f"v_add_u32 v{V_AR+2*wdw}, {wdw*65536}, v{V_AR}")
        a(f"v_add_u32 v{V_AR+2*wdw+1}, {wdw*65536}, v{V_AR+1}")
    a(f"v_lshrrev_b32 v{T}, 4, v{V_LANE}")
    a(f"v_bfe_u32 v{T+1}, v{V_LANE}, 2, 2")
    a(f"v_lshl_add_u32 v{V_BR}, v{T}, 3, v{T+1}")
    a(f"v_lshlrev_b32 v{V_BR}, 8, v{V_BR}")
    a(f"v_and_b32 v{T}, 1, v{T}")
    a(f"v_lshl_or_b32 v{T}, v{T}, 2, v{T+1}")
    a(f"s_lshl_b32 s{S_T2}, s{S_T1}, 2")
    a(f"v_xor_b32 v{T}, s{S_T2}, v{T}")
    a(f"v_lshl_add_u32 v{V_BR}, v{T}, 5, v{V_BR}")
    a(f"v_and_b32 v{T}, 3, v{V_LANE}")
    a(f"v_lshl_add_u32 v{V_BR}, v{T}, 3, v{V_BR}")
    for nb in range(1, 4):
        a(f"v_xor_b32 v{V_BR+nb}, {nb*32}, v{V_BR}")
    for wdw in range(1, NW):
        for nb in range(4):
            a(f"v_add_u32 v{V_BR+4*wdw+nb}, {wdw*65536}, v{V_BR+nb}")

    side_part1(a, vm, TMP, side_lds, "pq")

    def dma_ops(stage, part=None):
        ops = []
        slot = (stage % R) * SLOT
        if part in (None, 0):
            for i in range(4):
                ops.append(f"s_add_u32 m0, s{S_WB}, {slot + i*4096}")
                ops.append(("dma", f"buffer_load_dwordx4 v{V_AS+i}, s[{R_A}:{R_A+3}], s{S_KA} offen lds", f"S{stage}"))
            ops.append(f"s_add_u32 s{S_KA}, s{S_KA}, 128")
        if part in (None, 1):
            for i in range(4):
                ops.append(f"s_add_u32 m0, s{S_WB}, {slot + 16384 + i*4096}")
                ops.append(("dma", f"buffer_load_dwordx4 v{V_BS+i}, s[{R_X}:{R_X+3}], s{S_KB} offen lds", f"S{stage}"))
            ops.append(f"s_add_u32 s{S_KB}, s{S_KB}, {64*1280}")
        return ops

    def reg_ops(ops):
        out = []
        for o in ops:
            if isinstance(o, tuple):
                vm.issue(o[2])
                out.append(o[1])
            else:
                out.append(o)
        return out

    def rd_ops(s):
        st, ss = s // 2, s % 2
        base = (st % R) * SLOT
        fb = FR + (s % 2) * 32
        ops = []
        for i in range(4):
            off = base + 16384 + ss * 8192
            wdw, imm = off // 65536, off % 65536
            r = fb + 16 + i * 4
            ops.append(f"ds_read_b64_tr_b16 v[{r}:{r+1}], v{V_BR+4*wdw+i} offset:{imm}")
            ops.append(f"ds_read_b64_tr_b16 v[{r+2}:{r+3}], v{V_BR+4*wdw+i} offset:{imm+1024}")
            off = base + i * 2048
            wdw, imm = off // 65536, off % 65536
            r = fb + i * 4
            ops.append(f"ds_read_b128 v[{r}:{r+3}], v{V_AR+2*wdw+ss} offset:{imm}")
        return ops

    npre = R if side_lds >= R * SLOT else R - 1
    for st in range(npre):
        for o in reg_ops(dma_ops(st)):
            a(o)
    side_part2(a, vm, TMP, side_lds, "pq")
    stamp(a, 1)
    a(f"s_waitcnt vmcnt({vm.need(['S0'])})")
    a("s_barrier")
    stamp(a, 2)
    pend = []
    if npre < R:
        pend = dma_ops(R - 1)
    for o in rd_ops(0):
        a(o)
    for s in range(2 * NST):
        st, ss = s // 2, s % 2
        fb = FR + (s % 2) * 32
        mf = []
        for mb in range(4):
            for nb in range(4):
                c = ACC + (mb * 4 + nb) * 4
                src_c = "0" if s == 0 else f"v[{c}:{c+3}]"
                mf.append(f"v_mfma_f32_16x16x32_bf16 v[{c}:{c+3}], v[{fb+16+nb*4}:{fb+16+nb*4+3}], v[{fb+mb*4}:{fb+mb*4+3}], {src_c}")
        a("s_waitcnt lgkmcnt(0)")
        sync = []
        n0 = 0
        fill = []
        if ss == 1 and st + 1 < NST:
            n0 = CFG["pq_n0"]
            sync = [f"s_waitcnt vmcnt({vm.need([f'S{st+1}'])})", "s_barrier"]
        if s + 1 < 2 * NST:
            fill += rd_ops(s + 1)
        if ss == 1:
            if st + R < NST:
                fill += reg_ops(dma_ops(st + R, 0))
                pend = dma_ops(st + R, 1)
        else:
            fill += reg_ops(pend)
            pend = []
        interleave(a, mf, n0, sync, fill)
    stamp(a, 3)
    a("s_nop 7")
    a(f"v_lshlrev_b32 v{T}, 4, v{V_LANE}")
    for mb in range(4):
        for p in range(2):
            c0 = ACC + (mb * 4 + 2 * p) * 4
            c1 = c0 + 4
            o = FR + (mb * 2 + p) * 4
            a(f"v_cvt_pk_bf16_f32 v{o}, v{c0}, v{c0+1}")
            a(f"v_cvt_pk_bf16_f32 v{o+1}, v{c0+2}, v{c0+3}")
            a(f"v_cvt_pk_bf16_f32 v{o+2}, v{c1}, v{c1+1}")
            a(f"v_cvt_pk_bf16_f32 v{o+3}, v{c1+2}, v{c1+3}")
            a(f"buffer_store_dwordx4 v[{o}:{o+3}], v{T}, s[{R_WS}:{R_WS+3}], s{S_O0+p} offen offset:{mb*1024}")
    if CFG["stamps"]:
        a("s_waitcnt vmcnt(0)")
        stamp(a, 4)
        stamps_out(a, 5, 0)
    a("s_endpgm")


def gen_gu(a):
    vm = VM()
    NS = 20
    A_SLOT, NA = 32768, 3
    B_BASE, B_SLOT, NB = 98304, 16384, 4
    side_lds = B_BASE + 3 * B_SLOT
    V_AS = 2
    V_BS = 10
    V_AR = 12
    V_BR = 16
    T = 20
    ACCV = 32
    TMP = 64

    def acc_reg(mb, nb8):
        t = mb * 8 + nb8
        if mb >= 6 and nb8 >= 4:
            return ("a", 128 + ((mb - 6) * 4 + (nb8 - 4)) * 4)
        idx = mb * 8 + nb8 if mb < 6 else 48 + (mb - 6) * 4 + nb8
        return ("v", ACCV + idx * 4)

    a.label("L_gu")
    if CFG["gu_map"] == 1:
        a(f"s_mul_i32 s{S_T1}, s{S_IDX}, 171")
        a(f"s_lshr_b32 s{S_T1}, s{S_T1}, 9")
        a(f"s_mul_i32 s{S_T2}, s{S_T1}, 3")
        a(f"s_sub_u32 s{S_T2}, s{S_IDX}, s{S_T2}")
        a(f"s_and_b32 s{S_T3}, s{S_XCD}, 1")
        a(f"s_lshl_b32 s{S_T3}, s{S_T3}, 2")
        a(f"s_add_u32 s{S_T4}, s{S_T3}, s{S_T1}")
        a(f"s_lshr_b32 s{S_T3}, s{S_XCD}, 1")
        a(f"s_mul_i32 s{S_T3}, s{S_T3}, 3")
        a(f"s_add_u32 s{S_T2}, s{S_T2}, s{S_T3}")
    else:
        a(f"s_mov_b32 s{S_T4}, s{S_XCD}")
        a(f"s_mov_b32 s{S_T2}, s{S_IDX}")
    srd(a, R_WG, P_WG, P_WG + 1, 1966080)
    srd(a, R_WU, P_WU, P_WU + 1, 1966080)
    a(f"s_mul_i32 s{S_KA}, s{S_T4}, {256*1280}")
    a(f"s_lshl_b32 s{S_KB}, s{S_T2}, 8")
    a(f"s_lshr_b32 s{S_T0}, s{S_W}, 1")
    a(f"s_and_b32 s{S_T1}, s{S_W}, 1")
    a(f"s_lshl_b32 s{S_T4}, s{S_T4}, 2")
    a(f"s_lshl_b32 s{S_T3}, s{S_T0}, 1")
    a(f"s_add_u32 s{S_T4}, s{S_T4}, s{S_T3}")
    a(f"s_mul_i32 s{S_T4}, s{S_T4}, 88")
    a(f"s_add_u32 s{S_T4}, s{S_T4}, 40")
    a(f"s_lshl_b32 s{S_T2}, s{S_T2}, 2")
    a(f"s_add_u32 s{S_T4}, s{S_T4}, s{S_T2}")
    a(f"s_lshl_b32 s{S_T2}, s{S_T1}, 1")
    a(f"s_add_u32 s{S_T4}, s{S_T4}, s{S_T2}")
    a(f"s_lshl_b32 s{S_O0}, s{S_T4}, 12")
    a(f"v_lshrrev_b32 v{T}, 3, v{V_LANE}")
    a(f"s_lshl_b32 s{S_T2}, s{S_W}, 3")
    a(f"v_add_u32 v{T}, s{S_T2}, v{T}")
    a(f"v_mul_u32_u24 v{T}, 1280, v{T}")
    a(f"v_lshrrev_b32 v{T+1}, 4, v{V_LANE}")
    a(f"s_lshl_b32 s{S_T2}, s{S_T1}, 2")
    a(f"v_add_u32 v{T+1}, s{S_T2}, v{T+1}")
    a(f"v_and_b32 v{V_AS}, 7, v{V_LANE}")
    a(f"v_xor_b32 v{T+1}, v{T+1}, v{V_AS}")
    a(f"v_lshl_add_u32 v{V_AS}, v{T+1}, 4, v{T}")
    for i in range(1, 8):
        a(f"v_add_u32 v{V_AS+i}, {i*32*1280}, v{V_AS}")
    a(f"v_lshrrev_b32 v{T}, 4, v{V_LANE}")
    a(f"s_lshl_b32 s{S_T2}, s{S_W}, 2")
    a(f"v_add_u32 v{T+1}, s{S_T2}, v{T}")
    a(f"v_mul_u32_u24 v{V_BS}, 3072, v{T+1}")
    a(f"s_lshl_b32 s{S_T2}, s{S_T0}, 2")
    a(f"v_or_b32 v{T}, s{S_T2}, v{T}")
    a(f"v_bfe_u32 v{T+1}, v{V_LANE}, 1, 3")
    a(f"v_xor_b32 v{T}, v{T}, v{T+1}")
    a(f"v_lshl_add_u32 v{V_BS}, v{T}, 5, v{V_BS}")
    a(f"v_and_b32 v{T}, 1, v{V_LANE}")
    a(f"v_lshl_add_u32 v{V_BS}, v{T}, 4, v{V_BS}")
    a(f"v_add_u32 v{V_BS+1}, {16*3072}, v{V_BS}")
    a(f"v_and_b32 v{T}, 15, v{V_LANE}")
    a(f"s_lshl_b32 s{S_T2}, s{S_T0}, 7")
    a(f"v_add_u32 v{T}, s{S_T2}, v{T}")
    a(f"v_lshlrev_b32 v{T}, 7, v{T}")
    a(f"v_lshrrev_b32 v{T+1}, 4, v{V_LANE}")
    a(f"v_bfe_u32 v{V_AR}, v{V_LANE}, 1, 3")
    a(f"v_xor_b32 v{T+1}, v{T+1}, v{V_AR}")
    a(f"v_lshl_add_u32 v{V_AR}, v{T+1}, 4, v{T}")
    a(f"v_xor_b32 v{V_AR+1}, 64, v{V_AR}")
    a(f"v_add_u32 v{V_AR+2}, 65536, v{V_AR}")
    a(f"v_add_u32 v{V_AR+3}, 65536, v{V_AR+1}")
    a(f"v_lshrrev_b32 v{T}, 4, v{V_LANE}")
    a(f"v_bfe_u32 v{T+1}, v{V_LANE}, 2, 2")
    a(f"v_lshl_add_u32 v{V_BR}, v{T}, 3, v{T+1}")
    a(f"v_lshlrev_b32 v{V_BR}, 8, v{V_BR}")
    a(f"v_and_b32 v{T}, 1, v{T}")
    a(f"v_lshl_or_b32 v{T}, v{T}, 2, v{T+1}")
    a(f"s_lshl_b32 s{S_T2}, s{S_T1}, 2")
    a(f"v_xor_b32 v{T}, s{S_T2}, v{T}")
    a(f"v_lshl_add_u32 v{V_BR}, v{T}, 5, v{V_BR}")
    a(f"v_and_b32 v{T}, 3, v{V_LANE}")
    a(f"v_lshl_add_u32 v{V_BR}, v{T}, 3, v{V_BR}")
    a(f"v_add_u32 v{V_BR}, {B_BASE}, v{V_BR}")
    for nb in range(1, 4):
        a(f"v_xor_b32 v{V_BR+nb}, {nb*32}, v{V_BR}")

    side_part1(a, vm, TMP, side_lds, "gu")

    def dmaA(j, half=None):
        ops = []
        slot = (j % NA) * A_SLOT
        rng = range(8) if half is None else range(half * 4, half * 4 + 4)
        for i in rng:
            ops.append(f"s_add_u32 m0, s{S_WB}, {slot + i*4096}")
            ops.append(("dma", f"buffer_load_dwordx4 v{V_AS+i}, s[{R_X}:{R_X+3}], s{S_KA} offen lds", f"A{j}"))
        if half in (None, 1):
            ops.append(f"s_add_u32 s{S_KA}, s{S_KA}, 128")
        return ops

    def dmaB(s):
        ops = []
        slot = B_BASE + (s % NB) * B_SLOT
        for up in range(2):
            for i in range(2):
                ops.append(f"s_add_u32 m0, s{S_WB}, {slot + up*8192 + i*4096}")
                rr = R_WU if up else R_WG
                ops.append(("dma", f"buffer_load_dwordx4 v{V_BS+i}, s[{rr}:{rr+3}], s{S_KB} offen lds", f"B{s}"))
        ops.append(f"s_add_u32 s{S_KB}, s{S_KB}, {32*3072}")
        return ops

    def reg_ops(ops):
        out = []
        for o in ops:
            if isinstance(o, tuple):
                vm.issue(o[2])
                out.append(o[1])
            else:
                out.append(o)
        return out

    def rd_ops(s):
        j, ss = s // 2, s % 2
        fb = (s % 2) * 64
        ops = []
        for i in range(8):
            up, nb = i // 4, i % 4
            imm = (s % NB) * B_SLOT + up * 8192
            r = fb + 32 + i * 4
            ops.append(f"ds_read_b64_tr_b16 a[{r}:{r+1}], v{V_BR+nb} offset:{imm}")
            ops.append(f"ds_read_b64_tr_b16 a[{r+2}:{r+3}], v{V_BR+nb} offset:{imm+1024}")
            off = (j % NA) * A_SLOT + i * 2048
            wdw, imm = off // 65536, off % 65536
            r = fb + i * 4
            ops.append(f"ds_read_b128 a[{r}:{r+3}], v{V_AR+2*wdw+ss} offset:{imm}")
        return ops

    for ops in (dmaB(0), dmaA(0), dmaB(1), dmaB(2), dmaA(1), dmaA(2)):
        for o in reg_ops(ops):
            a(o)
    side_part2(a, vm, TMP, side_lds, "gu")
    stamp(a, 1)
    a(f"s_waitcnt vmcnt({vm.need(['A0','B0'])})")
    a("s_barrier")
    stamp(a, 2)
    for o in rd_ops(0):
        a(o)
    for o in reg_ops(dmaB(3)):
        a(o)
    for s in range(NS):
        j, ss = s // 2, s % 2
        fb = (s % 2) * 64
        mf = []
        for mb in range(8):
            for nb8 in range(8):
                k, c = acc_reg(mb, nb8)
                d = f"{k}[{c}:{c+3}]"
                src_c = "0" if s == 0 else d
                mf.append(f"v_mfma_f32_16x16x32_bf16 {d}, a[{fb+32+nb8*4}:{fb+32+nb8*4+3}], a[{fb+mb*4}:{fb+mb*4+3}], {src_c}")
        a("s_waitcnt lgkmcnt(0)")
        sync, fill, n0 = [], [], 0
        if s + 1 < NS:
            n0 = CFG["gu_n0"]
            need = [f"B{s+1}", f"A{(s+1)//2}"]
            sync = [f"s_waitcnt vmcnt({vm.need(need)})", "s_barrier"]
            fill += rd_ops(s + 1)
        if s + 4 < NS:
            fill += reg_ops(dmaB(s + 4))
        if ss == 1 and j + 3 < NS // 2:
            fill += reg_ops(dmaA(j + 3, 0))
        if ss == 0 and j >= 1 and j + 2 < NS // 2:
            fill += reg_ops(dmaA(j + 2, 1))
        interleave(a, mf, n0, sync, fill)
    stamp(a, 3)
    a("s_nop 7")
    a(f"v_lshlrev_b32 v{T}, 4, v{V_LANE}")
    a(f"s_mov_b32 s{S_T0}, 0xbfb8aa3b")
    U_TMP = 24
    for mb in range(8):
        for p in range(2):
            gs, us = [], []
            for nb in (2 * p, 2 * p + 1):
                kg, cg = acc_reg(mb, nb)
                ku, cu = acc_reg(mb, nb + 4)
                assert kg == "v"
                gs += [cg + r for r in range(4)]
                if ku == "a":
                    for r in range(4):
                        t = U_TMP + (nb % 2) * 4 + r
                        a(f"v_accvgpr_read_b32 v{t}, a{cu+r}")
                        us.append(t)
                else:
                    us += [cu + r for r in range(4)]
            for g in gs:
                a(f"v_mul_f32 v{g}, s{S_T0}, v{g}")
            for g in gs:
                a(f"v_exp_f32 v{g}, v{g}")
            for g in gs:
                a(f"v_add_f32 v{g}, 1.0, v{g}")
            for g in gs:
                a(f"v_rcp_f32 v{g}, v{g}")
            for g, u in zip(gs, us):
                a(f"v_mul_f32 v{g}, v{g}, v{u}")
            o = gs[0]
            assert o % 4 == 0
            a(f"v_cvt_pk_bf16_f32 v{o}, v{gs[0]}, v{gs[1]}")
            a(f"v_cvt_pk_bf16_f32 v{o+1}, v{gs[2]}, v{gs[3]}")
            a(f"v_cvt_pk_bf16_f32 v{o+2}, v{gs[4]}, v{gs[5]}")
            a(f"v_cvt_pk_bf16_f32 v{o+3}, v{gs[6]}, v{gs[7]}")
            so = (mb >> 2) * 88 * 4096 + p * 4096
            a(f"s_add_u32 s{S_O1}, s{S_O0}, {so}")
            a(f"buffer_store_dwordx4 v[{o}:{o+3}], v{T}, s[{R_WS}:{R_WS+3}], s{S_O1} offen offset:{(mb&3)*1024}")
    if CFG["stamps"]:
        a("s_waitcnt vmcnt(0)")
        stamp(a, 4)
        stamps_out(a, 5, 0)
    a("s_endpgm")


def gen_k1(a):
    a(".p2align 8")
    a(f".globl k1_kernel")
    a(".type k1_kernel,@function")
    a.label("k1_kernel")
    a("s_cmp_ge_u32 s2, 256")
    a("s_cbranch_scc1 L_k1_end")
    stamp(a, 0)
    a("s_load_dwordx16 s[16:31], s[0:1], 0")
    a("s_load_dwordx4 s[32:35], s[0:1], 64")
    a("s_load_dwordx2 s[36:37], s[0:1], 96")
    a(f"v_and_b32 v{V_LANE}, 63, v0")
    a("v_lshrrev_b32 v2, 6, v0")
    a("s_nop 0")
    a(f"v_readfirstlane_b32 s{S_W}, v2")
    a(f"s_and_b32 s{S_XCD}, s2, 7")
    a(f"s_lshr_b32 s{S_IDX}, s2, 3")
    a("s_nop 2")
    a(f"s_lshl_b32 s{S_WB}, s{S_W}, 10")
    a("s_waitcnt lgkmcnt(0)")
    srd(a, R_X, P_X, P_X + 1, 2621440)
    srd(a, R_WS, P_WS, P_WS + 1, WS_SIZE)
    srd(a, R_GW, P_GW, P_GW + 1, 1280)
    a(f"s_cmp_lt_u32 s{S_IDX}, 12")
    a("s_cbranch_scc1 L_gu_jump")
    gen_pq(a)
    a.label("L_k1_end")
    a("s_endpgm")
    a.label("L_gu_jump")
    gen_gu(a)


def gen_k2(a):
    D = CFG["k2_D"]
    NBUF = D + 1
    assert NBUF * 36 <= 256
    ACC = 16
    RB = 96
    V_L16, V_L16B, V_G, V_O, T = 2, 3, 4, 6, 8
    R_OUT = 44
    S_A, S_B = 69, 70
    a(".p2align 8")
    a(f".globl k2_kernel")
    a(".type k2_kernel,@function")
    a.label("k2_kernel")
    a("s_cmp_ge_u32 s2, 256")
    a("s_cbranch_scc1 L_k2_end")
    stamp(a, 0)
    a("s_load_dwordx2 s[16:17], s[0:1], 80")
    a("s_load_dwordx2 s[36:37], s[0:1], 96")
    a(f"v_and_b32 v{V_LANE}, 63, v0")
    a("v_lshrrev_b32 v2, 6, v0")
    a("s_nop 0")
    a(f"v_readfirstlane_b32 s{S_W}, v2")
    a(f"s_and_b32 s{S_XCD}, s2, 7")
    a(f"s_lshr_b32 s{S_IDX}, s2, 3")
    if CFG["k2_map"] == 1:
        a(f"s_lshr_b32 s{S_T0}, s{S_IDX}, 3")
        a(f"s_lshl_b32 s{S_T1}, s{S_XCD}, 2")
        a(f"s_add_u32 s{S_T0}, s{S_T0}, s{S_T1}")
        a(f"s_and_b32 s{S_T1}, s{S_IDX}, 7")
    else:
        a(f"s_lshr_b32 s{S_T0}, s{S_IDX}, 2")
        a(f"s_lshr_b32 s{S_T1}, s{S_XCD}, 1")
        a(f"s_lshl_b32 s{S_T1}, s{S_T1}, 3")
        a(f"s_add_u32 s{S_T0}, s{S_T0}, s{S_T1}")
        a(f"s_and_b32 s{S_T1}, s{S_IDX}, 3")
        a(f"s_and_b32 s{S_T2}, s{S_XCD}, 1")
        a(f"s_lshl_b32 s{S_T2}, s{S_T2}, 2")
        a(f"s_add_u32 s{S_T1}, s{S_T1}, s{S_T2}")
    a(f"s_mul_i32 s{S_T2}, s{S_W}, 20")
    a(f"s_cmp_eq_u32 s{S_W}, 3")
    a(f"s_cselect_b32 s{S_T2}, 64, s{S_T2}")
    a(f"s_mul_i32 s{S_A}, s{S_T0}, 88")
    a(f"s_add_u32 s{S_A}, s{S_A}, s{S_T2}")
    a(f"s_lshl_b32 s{S_A}, s{S_A}, 12")
    a(f"s_mul_i32 s{S_B}, s{S_T1}, 88")
    a(f"s_add_u32 s{S_B}, s{S_B}, s{S_T2}")
    a(f"s_mul_i32 s{S_B}, s{S_B}, 5120")
    a(f"s_add_u32 s{S_B}, s{S_B}, {WS_BPACK}")
    a(f"v_lshlrev_b32 v{V_L16}, 4, v{V_LANE}")
    a(f"v_add_u32 v{V_L16B}, 4096, v{V_L16}")
    a(f"s_lshl_b32 s{S_T3}, s{S_T0}, 6")
    a(f"s_lshl_b32 s{S_T4}, s{S_W}, 4")
    a(f"s_add_u32 s{S_T3}, s{S_T3}, s{S_T4}")
    a(f"v_and_b32 v{T}, 15, v{V_LANE}")
    a(f"v_add_u32 v{T}, s{S_T3}, v{T}")
    a(f"v_lshlrev_b32 v{T+1}, 3, v{T}")
    a(f"v_add_u32 v{T+1}, {WS_G}, v{T+1}")
    a(f"v_mul_u32_u24 v{V_O}, 1280, v{T}")
    a(f"v_lshrrev_b32 v{T+2}, 4, v{V_LANE}")
    a(f"v_lshl_add_u32 v{V_O}, v{T+2}, 3, v{V_O}")
    a(f"s_mul_i32 s{S_T4}, s{S_T1}, 160")
    a(f"v_add_u32 v{V_O}, s{S_T4}, v{V_O}")
    a("s_waitcnt lgkmcnt(0)")
    srd(a, R_WS, P_WS, P_WS + 1, WS_SIZE)
    srd(a, R_OUT, 16, 17, 2621440)
    a(f"buffer_load_dwordx2 v[{V_G}:{V_G+1}], v{T+1}, s[{R_WS}:{R_WS+3}], 0 offen")
    a(f"s_cmp_ge_u32 s{S_W}, 2")
    a("s_cbranch_scc1 L_k2_n24")

    def loads(kb):
        fb = (kb % NBUF) * 36
        ops = []
        for eb in range(5):
            r = fb + 16 + eb * 4
            if eb < 4:
                ops.append(f"buffer_load_dwordx4 a[{r}:{r+3}], v{V_L16}, s[{R_WS}:{R_WS+3}], s{S_B} offen offset:{eb*1024}")
            else:
                ops.append(f"buffer_load_dwordx4 a[{r}:{r+3}], v{V_L16B}, s[{R_WS}:{R_WS+3}], s{S_B} offen")
        for mb in range(4):
            r = fb + mb * 4
            ops.append(f"buffer_load_dwordx4 a[{r}:{r+3}], v{V_L16}, s[{R_WS}:{R_WS+3}], s{S_A} offen offset:{mb*1024}")
        ops.append(f"s_add_u32 s{S_A}, s{S_A}, 4096")
        ops.append(f"s_add_u32 s{S_B}, s{S_B}, 5120")
        return ops

    def body(n):
        for kb in range(D):
            for o in loads(kb):
                a(o)
        for kb in range(n):
            fb = (kb % NBUF) * 36
            outstanding_after = min(D - 1, n - 1 - kb) * 9
            a(f"s_waitcnt vmcnt({outstanding_after})")
            if kb == 0:
                stamp(a, 1)
            mf = []
            for mb in range(4):
                for eb in range(5):
                    c = ACC + (mb * 5 + eb) * 4
                    src_c = "0" if kb == 0 else f"v[{c}:{c+3}]"
                    mf.append(f"v_mfma_f32_16x16x32_bf16 v[{c}:{c+3}], a[{fb+16+eb*4}:{fb+16+eb*4+3}], a[{fb+mb*4}:{fb+mb*4+3}], {src_c}")
            fill = loads(kb + D) if kb + D < n else []
            interleave(a, mf, 0, [], fill, last=12)

    body(20)
    a("s_branch L_k2_red")
    a.label("L_k2_n24")
    body(24)
    a.label("L_k2_red")
    stamp(a, 2)
    a("s_nop 7")
    a(f"s_mul_i32 s{S_T0}, s{S_W}, 20480")
    a(f"v_add_u32 v{T}, s{S_T0}, v{V_L16}")
    for mb in range(4):
        for eb in range(5):
            c = ACC + (mb * 5 + eb) * 4
            a(f"ds_write_b128 v{T}, v[{c}:{c+3}] offset:{mb*5120+eb*1024}")
    a(f"s_mul_i32 s{S_T0}, s{S_W}, 5120")
    a(f"v_add_u32 v{T+1}, s{S_T0}, v{V_L16}")
    a(f"v_add_u32 v{T+2}, 40960, v{T+1}")
    a("s_waitcnt lgkmcnt(0)")
    a("s_barrier")
    for eb in range(5):
        for sw in range(4):
            r = RB + (eb * 4 + sw) * 4
            a(f"ds_read_b128 v[{r}:{r+3}], v{T+1+sw//2} offset:{(sw%2)*20480+eb*1024}")
    for eb in range(5):
        a(f"s_waitcnt lgkmcnt({min(15,(4-eb)*4)})")
        r = RB + eb * 16
        for i in range(4):
            a(f"v_sub_f32 v{r+i}, v{r+i}, v{r+4+i}")
            a(f"v_add_f32 v{r+8+i}, v{r+8+i}, v{r+12+i}")
        for i in range(4):
            a(f"v_mul_f32 v{r+i}, v{r+i}, v{V_G}")
        for i in range(4):
            a(f"v_fmac_f32 v{r+i}, v{r+8+i}, v{V_G+1}")
        a(f"v_cvt_pk_bf16_f32 v{r+4}, v{r}, v{r+1}")
        a(f"v_cvt_pk_bf16_f32 v{r+5}, v{r+2}, v{r+3}")
        a(f"buffer_store_dwordx2 v[{r+4}:{r+5}], v{V_O}, s[{R_OUT}:{R_OUT+3}], 0 offen offset:{eb*32}")
    if CFG["stamps"]:
        a("s_waitcnt vmcnt(0)")
        stamp(a, 3)
        stamps_out(a, 4, 1)
    a.label("L_k2_end")
    a("s_endpgm")


def kd(name, nv, acc_off):
    return f""".amdhsa_kernel {name}
  .amdhsa_next_free_vgpr {nv}
  .amdhsa_next_free_sgpr 102
  .amdhsa_accum_offset {acc_off}
  .amdhsa_group_segment_fixed_size 0
  .amdhsa_kernarg_size 104
  .amdhsa_user_sgpr_count 2
  .amdhsa_user_sgpr_kernarg_segment_ptr 1
  .amdhsa_system_sgpr_workgroup_id_x 1
.end_amdhsa_kernel
"""


def main(out, **kw):
    CFG.update(kw)
    a = Asm()
    hdr = f"""; gated_mix FNet + GLU, generated by gen.py  cfg={CFG}
; @launch kernel=k1_kernel grid=(256,1,1) block=(256,1,1) lds=163840
; @launch kernel=k2_kernel grid=(256,1,1) block=(256,1,1) lds=81920
.amdgcn_target "amdgcn-amd-amdhsa--gfx950"
.text
"""
    gen_k1(a)
    gen_k2(a)
    txt = hdr + a.text()
    txt += '.section .rodata,"a"\n.p2align 6\n' + kd("k1_kernel", 512, 256) + ".p2align 6\n" + kd("k2_kernel", 512, 256)
    open(out, "w").write(txt)
    print("wrote", out, len(txt), "bytes", len(a.l), "lines")


if __name__ == "__main__":
    out = sys.argv[1] if len(sys.argv) > 1 else f"cdna_kernels/{NAME}.s"
    kw = {}
    for x in sys.argv[2:]:
        k, v = x.split("=")
        kw[k] = int(v)
    main(out, **kw)
```

```python
import sys

NAME = "gated_mix__spectral_fnet__glu_gated_glu__prompt"
WS_APACK = 0
WS_BPACK = 0xB00000
WS_G = 0xF00000
WS_SIZE = 0xF04000
OOB = 0x7FFFFFF0

CFG = dict(
    pq_R=4,
    pq_n0=2,
    gu_n0=4,
    k2_D=6,
    gu_map=1,
    k2_map=1,
    stamps=0,
    pq_pre=2,
    pq_rate=8,
    pq_side_at=6,
    pq_lead=99, pq_L=8, pq_xsh=4, gu_L=5, gu_xsh=1,
    gu_rate=12,
    gu_tail=1,
    st_flag="",
    c_flag="", xb_flag="", xa_flag="", w_flag="", sd_flag="", k2a_flag="", k2b_flag="",
)


class Asm:
    def __init__(self):
        self.l = []

    def __call__(self, s):
        for x in s.split("\n"):
            x = x.strip()
            if x:
                self.l.append(x)

    def label(self, s):
        self.l.append(s + ":")

    def text(self):
        out = []
        for i, x in enumerate(self.l):
            if out and x.endswith(" lds") and " m0," in out[-1]:
                out.append("s_nop 0")
            out.append(x)
        res = []
        for x in out:
            if x.endswith(":") or x.startswith(".") or x.startswith(";"):
                res.append(x)
            else:
                res.append("  " + x)
        return "\n".join(res) + "\n"


class VM:
    def __init__(self):
        self.ops = []

    def issue(self, tag):
        self.ops.append(tag)

    def need(self, tags):
        last = -1
        for i, t in enumerate(self.ops):
            if t in tags:
                last = i
        if last < 0:
            return None
        n = len(self.ops) - 1 - last
        assert n <= 63, n
        return n


def srd(a, d, lo, hi, size):
    a(f"s_mov_b32 s{d}, s{lo}")
    a(f"s_mov_b32 s{d+1}, s{hi}")
    a(f"s_mov_b32 s{d+2}, {size}")
    a(f"s_mov_b32 s{d+3}, 0x20000")


def interleave(a, mfmas, n0, sync, fillers, last=None):
    n = len(mfmas)
    if last is None:
        last = n - 1
    gaps = list(range(n0, last + 1))
    per = {g: [] for g in range(n + 1)}
    nf = len(fillers)
    ng = len(gaps)
    for i, f in enumerate(fillers):
        g = gaps[min(ng - 1, (i * ng) // max(nf, 1))]
        per[g].append(f)
    for i in range(n):
        if i == n0:
            for s in sync:
                a(s)
        for f in per[i]:
            a(f)
        a(mfmas[i])
    if n0 >= n:
        for s in sync:
            a(s)
        for f in fillers:
            a(f)


S_W = 4
S_XCD = 5
S_IDX = 6
S_U = 7
P_X, P_CR, P_CI, P_DR, P_DI, P_BX, P_WG, P_WU = 16, 18, 20, 22, 24, 26, 28, 30
P_WD, P_GW, P_WS = 32, 34, 36
R_X, R_A, R_WG, R_WU, R_WS, R_SIDE, R_GW = 40, 44, 48, 52, 56, 60, 64
S_WB = 68
S_KA, S_KB = 69, 70
S_T0, S_T1, S_T2, S_T3, S_T4, S_T5 = 72, 73, 74, 75, 76, 77
S_KIND = 78
S_SB, S_SK = 79, 80
S_O0, S_O1 = 81, 82
S_SB2, S_SK2 = 71, 83
S_POS, S_XSH, S_POSB, S_XSHB = 8, 9, 10, 11
S_ST = 84

V_LANE = 1


def bpack_addr(a, sB, sK, dst):
    a(f"s_mul_i32 s{S_T0}, s{sB}, 205")
    a(f"s_lshr_b32 s{S_T0}, s{S_T0}, 10")
    a(f"s_mul_i32 s{S_T1}, s{S_T0}, 5")
    a(f"s_sub_u32 s{S_T1}, s{sB}, s{S_T1}")
    a(f"s_mul_i32 s{S_T0}, s{S_T0}, 88")
    a(f"s_add_u32 s{S_T0}, s{S_T0}, s{sK}")
    a(f"s_mul_i32 s{S_T0}, s{S_T0}, 5")
    a(f"s_add_u32 s{S_T0}, s{S_T0}, s{S_T1}")
    a(f"s_lshl_b32 s{dst}, s{S_T0}, 10")


def d_unit_load(a, sUnit, F, vaddr, sB, sK, valid_lt):
    a(f"s_cmp_ge_u32 s{sUnit}, 200")
    a(f"s_cselect_b32 s{S_T0}, 200, 0")
    a(f"s_cselect_b32 s{S_T1}, 20, 0")
    a(f"s_cselect_b32 s{R_SIDE}, s{P_DI}, s{P_DR}")
    a(f"s_cselect_b32 s{R_SIDE+1}, s{P_DI+1}, s{P_DR+1}")
    a(f"s_cmp_lt_u32 s{sUnit}, {valid_lt}")
    a(f"s_cselect_b32 s{R_SIDE+2}, 819200, 0")
    a(f"s_mov_b32 s{R_SIDE+3}, 0x20000")
    a(f"s_sub_u32 s{S_T0}, s{sUnit}, s{S_T0}")
    a(f"s_mul_i32 s{sB}, s{S_T0}, 205")
    a(f"s_lshr_b32 s{sB}, s{sB}, 10")
    a(f"s_mul_i32 s{S_T2}, s{sB}, 5")
    a(f"s_sub_u32 s{S_T2}, s{S_T0}, s{S_T2}")
    a(f"s_lshl_b32 s{sK}, s{S_T2}, 2")
    a(f"s_add_u32 s{sK}, s{sK}, s{S_T1}")
    a(f"s_mul_i32 s{S_T3}, s{sB}, {16*1280}")
    a(f"s_lshl_b32 s{S_T2}, s{S_T2}, 8")
    a(f"s_add_u32 s{S_T3}, s{S_T3}, s{S_T2}")
    for kk in range(4):
        for h in range(2):
            r = F + kk * 4 + h * 2
            a(f"buffer_load_dwordx2 v[{r}:{r+1}], v{vaddr}, s[{R_SIDE}:{R_SIDE+3}], s{S_T3} offen offset:{kk*64+h*32}{CFG['sd_flag']}")


def d_unit_store(a, F, vl16, sB, sK, sBase):
    bpack_addr(a, sB, sK, S_T2)
    a(f"s_add_u32 s{S_T2}, s{S_T2}, s{sBase}")
    for kk in range(4):
        a(f"buffer_store_dwordx4 v[{F+kk*4}:{F+kk*4+3}], v{vl16}, s[{R_WS}:{R_WS+3}], s{S_T2} offen{CFG['st_flag']}")
        a(f"s_add_u32 s{S_T2}, s{S_T2}, 5120")


def side_part1(a, vm, tmp, side_lds, tagp):
    X, G, F, F2, T = tmp, tmp + 20, tmp + 40, tmp + 56, tmp + 72
    a(f"s_sub_u32 s{S_T0}, s2, 96")
    a(f"s_lshl_b32 s{S_U}, s{S_T0}, 2")
    a(f"s_add_u32 s{S_U}, s{S_U}, s{S_W}")
    a(f"v_and_b32 v{T}, 15, v{V_LANE}")
    a(f"v_mul_u32_u24 v{T+5}, 1280, v{T}")
    a(f"v_lshrrev_b32 v{T+6}, 4, v{V_LANE}")
    a(f"v_lshl_add_u32 v{T+5}, v{T+6}, 3, v{T+5}")
    lab = f"Ls{tagp}"
    a(f"s_cmp_lt_u32 s{S_U}, 480")
    a(f"s_cbranch_scc1 {lab}_wd")
    a(f"s_mov_b32 s{S_KIND}, 0")
    a(f"s_sub_u32 s{S_T4}, s{S_U}, 480")
    d_unit_load(a, S_T4, F, T + 5, S_SB, S_SK, 400)
    a(f"s_branch {lab}_done1")
    a.label(f"{lab}_wd")
    a(f"s_mov_b32 s{S_KIND}, 1")
    srd(a, R_SIDE, P_WD, P_WD + 1, 1966080)
    a(f"s_mul_i32 s{S_SK}, s{S_U}, 205")
    a(f"s_lshr_b32 s{S_SK}, s{S_SK}, 11")
    a(f"s_mul_i32 s{S_T2}, s{S_SK}, 10")
    a(f"s_sub_u32 s{S_SB}, s{S_U}, s{S_T2}")
    a(f"v_lshrrev_b32 v{T+7}, 3, v{V_LANE}")
    a(f"v_mul_u32_u24 v{T+7}, 1280, v{T+7}")
    a(f"v_and_b32 v{T+8}, 7, v{V_LANE}")
    a(f"v_lshl_add_u32 v{T+7}, v{T+8}, 4, v{T+7}")
    a(f"s_mul_i32 s{S_T3}, s{S_SK}, {32*1280}")
    a(f"s_lshl_b32 s{S_T2}, s{S_SB}, 7")
    a(f"s_add_u32 s{S_T3}, s{S_T3}, s{S_T2}")
    a(f"s_lshl_b32 s{S_T4}, s{S_W}, 12")
    for i in range(4):
        a(f"s_add_u32 m0, s{S_T4}, {side_lds + i*1024}")
        a("s_nop 0")
        a(f"buffer_load_dwordx4 v{T+7}, s[{R_SIDE}:{R_SIDE+3}], s{S_T3} offen{CFG['sd_flag']} lds")
        a(f"s_add_u32 s{S_T3}, s{S_T3}, {8*1280}")
    a(f"v_mov_b32 v{T+8}, {OOB}")
    for i in range(4):
        a(f"buffer_load_dword v{F+i}, v{T+8}, s[{R_SIDE}:{R_SIDE+3}], 0 offen")
    a.label(f"{lab}_done1")
    for i in range(8):
        vm.issue(tagp)
    a(f"s_add_u32 s{S_T4}, s{S_U}, 160")
    d_unit_load(a, S_T4, F2, T + 5, S_SB2, S_SK2, 400)
    for i in range(8):
        vm.issue(tagp)
    a(f"s_lshl_b32 s{S_T0}, s{S_U}, 2")
    a(f"v_add_u32 v{T+1}, s{S_T0}, v{T+6}")
    a(f"v_mul_u32_u24 v{T+2}, 1280, v{T+1}")
    a(f"v_lshlrev_b32 v{T+3}, 4, v{T}")
    a(f"v_add_u32 v{T+2}, v{T+2}, v{T+3}")
    for c in range(5):
        a(f"buffer_load_dwordx4 v[{X+4*c}:{X+4*c+3}], v{T+2}, s[{R_X}:{R_X+3}], 0 offen offset:{c*256}"); vm.issue(tagp)
    for c in range(5):
        a(f"buffer_load_dwordx4 v[{G+4*c}:{G+4*c+3}], v{T+3}, s[{R_GW}:{R_GW+3}], 0 offen offset:{c*256}"); vm.issue(tagp)


def side_part2(a, vm, tmp, side_lds, tagp):
    X, G, F, F2, T = tmp, tmp + 20, tmp + 40, tmp + 56, tmp + 72
    lab = f"Ls{tagp}"
    n = vm.need([tagp])
    a(f"s_waitcnt vmcnt({n})")
    a(f"v_lshlrev_b32 v{T+4}, 4, v{V_LANE}")
    a(f"s_mov_b32 s{S_T5}, {WS_BPACK}")
    a(f"s_cmp_eq_u32 s{S_KIND}, 0")
    a(f"s_cbranch_scc0 {lab}_notD2")
    d_unit_store(a, F, T + 4, S_SB, S_SK, S_T5)
    a(f"s_branch {lab}_done2")
    a.label(f"{lab}_notD2")
    a(f"v_lshrrev_b32 v{T+5}, 2, v{V_LANE}")
    a(f"v_lshlrev_b32 v{T+5}, 7, v{T+5}")
    a(f"v_and_b32 v{T+6}, 3, v{V_LANE}")
    a(f"v_lshl_add_u32 v{T+5}, v{T+6}, 3, v{T+5}")
    a(f"s_lshl_b32 s{S_T4}, s{S_W}, 12")
    a(f"s_add_u32 s{S_T4}, s{S_T4}, {side_lds}")
    a(f"v_add_u32 v{T+5}, s{S_T4}, v{T+5}")
    for bb in range(4):
        for h in range(2):
            r = F + bb * 4 + h * 2
            a(f"ds_read_b64_tr_b16 v[{r}:{r+1}], v{T+5} offset:{h*2048+bb*32}")
    a(f"s_add_u32 s{S_SK}, s{S_SK}, 40")
    a(f"s_lshl_b32 s{S_SB}, s{S_SB}, 2")
    a("s_waitcnt lgkmcnt(0)")
    for bb in range(4):
        a(f"s_add_u32 s{S_T3}, s{S_SB}, {bb}")
        bpack_addr(a, S_T3, S_SK, S_T2)
        a(f"s_add_u32 s{S_T2}, s{S_T2}, s{S_T5}")
        a(f"buffer_store_dwordx4 v[{F+bb*4}:{F+bb*4+3}], v{T+4}, s[{R_WS}:{R_WS+3}], s{S_T2} offen{CFG['st_flag']}")
    a.label(f"{lab}_done2")
    for i in range(4):
        vm.issue(tagp + "st")
    a(f"s_cmp_lt_u32 s{S_U}, 240")
    a(f"s_mov_b32 s{S_T4}, {OOB}")
    a(f"s_cselect_b32 s{S_T5}, s{S_T5}, s{S_T4}")
    d_unit_store(a, F2, T + 4, S_SB2, S_SK2, S_T5)
    for i in range(4):
        vm.issue(tagp + "st")
    acc = T + 9
    t0 = T + 10
    assert t0 % 2 == 0
    a(f"v_mov_b32 v{acc}, 0")
    a(f"s_mov_b32 s{S_T0}, 0x3f803f80")
    for i in range(20):
        a(f"v_lshlrev_b32 v{t0}, 16, v{X+i}")
        a(f"v_and_b32 v{t0+1}, 0xffff0000, v{X+i}")
        a(f"v_lshlrev_b32 v{t0+2}, 16, v{G+i}")
        a(f"v_and_b32 v{t0+3}, 0xffff0000, v{G+i}")
        a(f"v_pk_mul_f32 v[{t0}:{t0+1}], v[{t0}:{t0+1}], v[{t0+2}:{t0+3}]")
        a(f"v_cvt_pk_bf16_f32 v{X+i}, v{t0}, v{t0+1}")
    for i in range(20):
        a(f"v_dot2_f32_bf16 v{acc}, v{X+i}, s{S_T0}, v{acc}")
    a("s_nop 2")
    for dpp in ("quad_perm:[1,0,3,2]", "quad_perm:[2,3,0,1]", "row_half_mirror", "row_mirror"):
        a("s_nop 1")
        a(f"v_add_f32_dpp v{acc}, v{acc}, v{acc} {dpp} row_mask:0xf bank_mask:0xf")
    a(f"v_cvt_pk_bf16_f32 v{acc}, v{acc}, v{acc}")
    a(f"v_and_b32 v{acc}, 0xffff0000, v{acc}")
    a(f"v_mul_f32 v{acc}, 0xbfb8aa3b, v{acc}")
    a(f"v_exp_f32 v{acc}, v{acc}")
    a("s_nop 0")
    a(f"v_add_f32 v{acc}, 1.0, v{acc}")
    a(f"v_rcp_f32 v{acc}, v{acc}")
    a("s_nop 0")
    g0 = t0 + 2
    a(f"v_cvt_pk_bf16_f32 v{acc}, v{acc}, v{acc}")
    a(f"v_and_b32 v{g0}, 0xffff0000, v{acc}")
    a(f"v_sub_f32 v{acc}, 1.0, v{g0}")
    a(f"v_cvt_pk_bf16_f32 v{acc}, v{acc}, v{acc}")
    a(f"v_and_b32 v{g0+1}, 0xffff0000, v{acc}")
    a(f"v_lshlrev_b32 v{t0}, 3, v{T+1}")
    a(f"v_add_u32 v{t0}, {WS_G}, v{t0}")
    a(f"v_mov_b32 v{t0+1}, {OOB}")
    a(f"v_cmp_eq_u32 vcc, 0, v{T}")
    a("s_nop 1")
    a(f"v_cndmask_b32 v{t0+1}, v{t0+1}, v{t0}, vcc")
    a(f"buffer_store_dwordx2 v[{g0}:{g0+1}], v{t0+1}, s[{R_WS}:{R_WS+3}], 0 offen{CFG['st_flag']}")
    vm.issue(tagp + "st")
    a("s_nop 1")


class DmaQ:
    def __init__(self, vm):
        self.q = []
        self.vm = vm

    def add(self, free_after, ops):
        for o in ops:
            self.q.append((free_after, o))

    def take(self, bar, maxn):
        out = []
        n = 0
        while self.q and self.q[0][0] <= bar:
            o = self.q[0][1]
            if isinstance(o, tuple):
                self.vm.issue(o[2])
                out.append(o[1])
                n += 1
                self.q.pop(0)
                if n >= maxn:
                    while self.q and not isinstance(self.q[0][1], tuple) and " m0," not in self.q[0][1]:
                        out.append(self.q.pop(0)[1])
                    break
            else:
                out.append(o)
                self.q.pop(0)
        return out


def stamp(a, idx):
    if CFG["stamps"]:
        a(f"s_memtime s[{S_ST+2*idx}:{S_ST+2*idx+1}]")


def stamps_out(a, n, kernel_slot):
    if not CFG["stamps"]:
        return
    a("s_waitcnt lgkmcnt(0) vmcnt(0)")
    a(f"s_lshl_b32 s{S_T0}, s2, 2")
    a(f"s_add_u32 s{S_T0}, s{S_T0}, s{S_W}")
    a(f"s_lshl_b32 s{S_T0}, s{S_T0}, 6")
    a(f"s_add_u32 s{S_T0}, s{S_T0}, {0x1000000 + kernel_slot*0x10000}")
    a(f"s_mov_b32 s{R_WS+2}, 0x2000000")
    a(f"v_mov_b32 v2, 0")
    a(f"v_cmp_eq_u32 vcc, 0, v{V_LANE}")
    a(f"s_and_saveexec_b64 s[{S_T2}:{S_T3}], vcc")
    for i in range(n):
        a(f"v_mov_b32 v3, s{S_ST+2*i}")
        a(f"buffer_store_dword v3, v2, s[{R_WS}:{R_WS+3}], s{S_T0} offen offset:{4*i}")
        a("s_nop 1")
    a(f"s_getreg_b32 s{S_T4}, hwreg(HW_REG_XCC_ID)")
    a(f"v_mov_b32 v3, s{S_T4}")
    a(f"buffer_store_dword v3, v2, s[{R_WS}:{R_WS+3}], s{S_T0} offen offset:60")
    a(f"s_mov_b64 exec, s[{S_T2}:{S_T3}]")


def gen_pq(a):
    R = CFG["pq_R"]
    NST = 32
    SLOT = 32768
    assert R == 4
    side_lds = 4 * SLOT
    vm = VM()
    ACC = 32
    FR = 96
    V_AS = 2
    V_BS = 6
    NW = (R * SLOT + 65535) // 65536
    V_AR = 10
    V_BR = V_AR + 2 * NW
    assert V_BR + 4 * NW <= 30
    T = 30
    TMP = 160
    a.label("L_pq")
    a(f"s_sub_u32 s{S_T0}, s{S_IDX}, 12")
    a(f"s_mul_i32 s{S_T1}, s{S_T0}, 205")
    a(f"s_lshr_b32 s{S_T1}, s{S_T1}, 10")
    a(f"s_mul_i32 s{S_T2}, s{S_T1}, 5")
    a(f"s_sub_u32 s{S_T2}, s{S_T0}, s{S_T2}")
    L = CFG["pq_L"]
    if L > 1:
        a(f"s_mul_i32 s{S_POS}, s{S_T2}, {(L*256+2)//5}")
        a(f"s_add_u32 s{S_POS}, s{S_POS}, 128")
        a(f"s_lshr_b32 s{S_POS}, s{S_POS}, 8")
        a(f"s_mul_i32 s{S_T3}, s{S_T1}, {L//4}")
        a(f"s_add_u32 s{S_POS}, s{S_POS}, s{S_T3}")
        a(f"s_and_b32 s{S_POS}, s{S_POS}, {L-1}")
    else:
        a(f"s_mov_b32 s{S_POS}, 0")
    a(f"s_mul_i32 s{S_XSH}, s{S_XCD}, {CFG['pq_xsh']*128}")
    a(f"s_and_b32 s{S_XSH}, s{S_XSH}, {4095 & ~(L*128-1)}")
    a(f"s_lshl_b32 s{S_KA}, s{S_POS}, 7")
    a(f"s_add_u32 s{S_KA}, s{S_KA}, s{S_XSH}")
    a(f"s_mul_i32 s{S_KB}, s{S_KA}, 640")
    a(f"s_lshr_b32 s{S_T3}, s{S_T1}, 1")
    a(f"s_and_b32 s{S_T1}, s{S_T1}, 1")
    a(f"s_lshl_b32 s{S_T4}, s{S_XCD}, 1")
    a(f"s_add_u32 s{S_T4}, s{S_T4}, s{S_T1}")
    a(f"s_cmp_eq_u32 s{S_T3}, 1")
    a(f"s_cselect_b32 s{R_A}, s{P_CI}, s{P_CR}")
    a(f"s_cselect_b32 s{R_A+1}, s{P_CI+1}, s{P_CR+1}")
    a(f"s_mov_b32 s{R_A+2}, 8388608")
    a(f"s_mov_b32 s{R_A+3}, 0x20000")
    a(f"s_lshr_b32 s{S_T0}, s{S_W}, 1")
    a(f"s_and_b32 s{S_T1}, s{S_W}, 1")
    a(f"v_lshrrev_b32 v{T}, 3, v{V_LANE}")
    a(f"s_lshl_b32 s{S_T5}, s{S_W}, 3")
    a(f"s_lshl_b32 s{S_O0}, s{S_T4}, 7")
    a(f"s_add_u32 s{S_T5}, s{S_T5}, s{S_O0}")
    a(f"v_add_u32 v{T}, s{S_T5}, v{T}")
    a(f"v_lshlrev_b32 v{T}, 12, v{T}")
    a(f"v_lshrrev_b32 v{T+1}, 4, v{V_LANE}")
    a(f"s_lshl_b32 s{S_T5}, s{S_T1}, 2")
    a(f"v_add_u32 v{T+1}, s{S_T5}, v{T+1}")
    a(f"v_and_b32 v{V_AS}, 7, v{V_LANE}")
    a(f"v_xor_b32 v{T+1}, v{T+1}, v{V_AS}")
    a(f"v_lshl_add_u32 v{V_AS}, v{T+1}, 4, v{T}")
    for i in range(1, 4):
        a(f"v_add_u32 v{V_AS+i}, {i*32*4096}, v{V_AS}")
    a(f"v_lshrrev_b32 v{T}, 4, v{V_LANE}")
    a(f"s_lshl_b32 s{S_T5}, s{S_W}, 2")
    a(f"v_add_u32 v{T+1}, s{S_T5}, v{T}")
    a(f"v_mul_u32_u24 v{V_BS}, 1280, v{T+1}")
    a(f"s_lshl_b32 s{S_T5}, s{S_T0}, 2")
    a(f"v_or_b32 v{T}, s{S_T5}, v{T}")
    a(f"v_bfe_u32 v{T+1}, v{V_LANE}, 1, 3")
    a(f"v_xor_b32 v{T}, v{T}, v{T+1}")
    a(f"v_lshl_add_u32 v{V_BS}, v{T}, 5, v{V_BS}")
    a(f"v_and_b32 v{T}, 1, v{V_LANE}")
    a(f"v_lshl_add_u32 v{V_BS}, v{T}, 4, v{V_BS}")
    a(f"s_lshl_b32 s{S_T5}, s{S_T2}, 8")
    a(f"v_add_u32 v{V_BS}, s{S_T5}, v{V_BS}")
    for i in range(1, 4):
        a(f"v_add_u32 v{V_BS+i}, {i*16*1280}, v{V_BS}")

    q = DmaQ(vm)
    for stage in range(NST):
        slot = (stage % R) * SLOT
        ops = []
        for i in range(4):
            ops.append(f"s_add_u32 m0, s{S_WB}, {slot + i*4096}")
            ops.append(("dma", f"buffer_load_dwordx4 v{V_AS+i}, s[{R_A}:{R_A+3}], s{S_KA} offen{CFG['c_flag'] if stage % L < CFG['pq_lead'] else ''} lds", f"S{stage}"))
        for i in range(4):
            ops.append(f"s_add_u32 m0, s{S_WB}, {slot + 16384 + i*4096}")
            ops.append(("dma", f"buffer_load_dwordx4 v{V_BS+i}, s[{R_X}:{R_X+3}], s{S_KB} offen{CFG['xb_flag']} lds", f"S{stage}"))
        ops.append(f"s_add_u32 s{S_POS}, s{S_POS}, 1")
        ops.append(f"s_and_b32 s{S_POS}, s{S_POS}, {L-1}")
        if (stage + 1) % L == 0:
            ops.append(f"s_add_u32 s{S_XSH}, s{S_XSH}, {L*128}")
            ops.append(f"s_and_b32 s{S_XSH}, s{S_XSH}, 4095")
        ops.append(f"s_lshl_b32 s{S_KA}, s{S_POS}, 7")
        ops.append(f"s_add_u32 s{S_KA}, s{S_KA}, s{S_XSH}")
        ops.append(f"s_mul_i32 s{S_KB}, s{S_KA}, 640")
        q.add(-1 if stage < R else 2 * (stage - R) + 1, ops)
    for o in q.take(-1, 8 * CFG["pq_pre"]):
        a(o)
    stamp(a, 2)

    a(f"s_lshl_b32 s{S_T4}, s{S_T4}, 1")
    a(f"s_add_u32 s{S_T4}, s{S_T4}, s{S_T0}")
    a(f"s_mul_i32 s{S_T4}, s{S_T4}, 88")
    a(f"s_mul_i32 s{S_T3}, s{S_T3}, 20")
    a(f"s_add_u32 s{S_T4}, s{S_T4}, s{S_T3}")
    a(f"s_lshl_b32 s{S_T2}, s{S_T2}, 2")
    a(f"s_add_u32 s{S_T4}, s{S_T4}, s{S_T2}")
    a(f"s_lshl_b32 s{S_T2}, s{S_T1}, 1")
    a(f"s_add_u32 s{S_T4}, s{S_T4}, s{S_T2}")
    a(f"s_lshl_b32 s{S_O0}, s{S_T4}, 12")
    a(f"s_add_u32 s{S_O1}, s{S_O0}, 4096")
    a(f"v_and_b32 v{T}, 15, v{V_LANE}")
    a(f"s_lshl_b32 s{S_T2}, s{S_T0}, 6")
    a(f"v_add_u32 v{T}, s{S_T2}, v{T}")
    a(f"v_lshlrev_b32 v{T}, 7, v{T}")
    a(f"v_lshrrev_b32 v{T+1}, 4, v{V_LANE}")
    a(f"v_bfe_u32 v{V_AR}, v{V_LANE}, 1, 3")
    a(f"v_xor_b32 v{T+1}, v{T+1}, v{V_AR}")
    a(f"v_lshl_add_u32 v{V_AR}, v{T+1}, 4, v{T}")
    a(f"v_xor_b32 v{V_AR+1}, 64, v{V_AR}")
    for wdw in range(1, NW):
        a(f"v_add_u32 v{V_AR+2*wdw}, {wdw*65536}, v{V_AR}")
        a(f"v_add_u32 v{V_AR+2*wdw+1}, {wdw*65536}, v{V_AR+1}")
    a(f"v_lshrrev_b32 v{T}, 4, v{V_LANE}")
    a(f"v_bfe_u32 v{T+1}, v{V_LANE}, 2, 2")
    a(f"v_lshl_add_u32 v{V_BR}, v{T}, 3, v{T+1}")
    a(f"v_lshlrev_b32 v{V_BR}, 8, v{V_BR}")
    a(f"v_and_b32 v{T}, 1, v{T}")
    a(f"v_lshl_or_b32 v{T}, v{T}, 2, v{T+1}")
    a(f"s_lshl_b32 s{S_T2}, s{S_T1}, 2")
    a(f"v_xor_b32 v{T}, s{S_T2}, v{T}")
    a(f"v_lshl_add_u32 v{V_BR}, v{T}, 5, v{V_BR}")
    a(f"v_and_b32 v{T}, 3, v{V_LANE}")
    a(f"v_lshl_add_u32 v{V_BR}, v{T}, 3, v{V_BR}")
    for nb in range(1, 4):
        a(f"v_xor_b32 v{V_BR+nb}, {nb*32}, v{V_BR}")
    for wdw in range(1, NW):
        for nb in range(4):
            a(f"v_add_u32 v{V_BR+4*wdw+nb}, {wdw*65536}, v{V_BR+nb}")

    side_part1(a, vm, TMP, side_lds, "pq")
    stamp(a, 3)

    def rd_ops(s):
        st, ss = s // 2, s % 2
        base = (st % R) * SLOT
        fb = FR + (s % 2) * 32
        ops = []
        for i in range(4):
            off = base + 16384 + ss * 8192
            wdw, imm = off // 65536, off % 65536
            r = fb + 16 + i * 4
            ops.append(f"ds_read_b64_tr_b16 v[{r}:{r+1}], v{V_BR+4*wdw+i} offset:{imm}")
            ops.append(f"ds_read_b64_tr_b16 v[{r+2}:{r+3}], v{V_BR+4*wdw+i} offset:{imm+1024}")
            off = base + i * 2048
            wdw, imm = off // 65536, off % 65536
            r = fb + i * 4
            ops.append(f"ds_read_b128 v[{r}:{r+3}], v{V_AR+2*wdw+ss} offset:{imm}")
        return ops

    a(f"s_waitcnt vmcnt({vm.need(['S0'])})")
    a("s_barrier")
    stamp(a, 4)
    for o in rd_ops(0):
        a(o)
    bar = -1
    for s in range(2 * NST):
        st, ss = s // 2, s % 2
        fb = FR + (s % 2) * 32
        mf = []
        for mb in range(4):
            for nb in range(4):
                c = ACC + (mb * 4 + nb) * 4
                src_c = "0" if s == 0 else f"v[{c}:{c+3}]"
                mf.append(f"v_mfma_f32_16x16x32_bf16 v[{c}:{c+3}], v[{fb+16+nb*4}:{fb+16+nb*4+3}], v[{fb+mb*4}:{fb+mb*4+3}], {src_c}")
        a("s_waitcnt lgkmcnt(0)")
        sync = []
        n0 = 0
        fill = []
        if ss == 1 and st + 1 < NST:
            n0 = CFG["pq_n0"]
            sync = [f"s_waitcnt vmcnt({vm.need([f'S{st+1}'])})", "s_barrier"]
            bar = s
        if s + 1 < 2 * NST:
            fill += rd_ops(s + 1)
        rate = CFG["pq_rate"] if s < 2 * R else 4
        fill += q.take(bar, rate)
        interleave(a, mf, n0, sync, fill)
        if s == CFG["pq_side_at"]:
            stamp(a, 5)
            side_part2(a, vm, TMP, side_lds, "pq")
            stamp(a, 6)
    assert not q.q
    stamp(a, 7)
    a("s_nop 7")
    a(f"v_lshlrev_b32 v{T}, 4, v{V_LANE}")
    for mb in range(4):
        for p in range(2):
            c0 = ACC + (mb * 4 + 2 * p) * 4
            c1 = c0 + 4
            o = FR + (mb * 2 + p) * 4
            a(f"v_cvt_pk_bf16_f32 v{o}, v{c0}, v{c0+1}")
            a(f"v_cvt_pk_bf16_f32 v{o+1}, v{c0+2}, v{c0+3}")
            a(f"v_cvt_pk_bf16_f32 v{o+2}, v{c1}, v{c1+1}")
            a(f"v_cvt_pk_bf16_f32 v{o+3}, v{c1+2}, v{c1+3}")
            a(f"buffer_store_dwordx4 v[{o}:{o+3}], v{T}, s[{R_WS}:{R_WS+3}], s{S_O0+p} offen offset:{mb*1024}{CFG['st_flag']}")
    if CFG["stamps"]:
        a("s_waitcnt vmcnt(0)")
        stamp(a, 8)
        stamps_out(a, 9, 0)
    a("s_endpgm")


def gen_gu(a):
    vm = VM()
    NS = 20
    A_SLOT, NA = 32768, 3
    B_BASE, B_SLOT, NB = 98304, 16384, 4
    V_AS = 2
    V_BS = 10
    V_AR = 12
    V_BR = 16
    T = 20
    ACCV = 32

    def acc_reg(mb, nb8):
        if mb >= 6 and nb8 >= 4:
            return ("a", 128 + ((mb - 6) * 4 + (nb8 - 4)) * 4)
        idx = mb * 8 + nb8 if mb < 6 else 48 + (mb - 6) * 4 + nb8
        return ("v", ACCV + idx * 4)

    a.label("L_gu")
    GL = CFG["gu_L"]
    assert GL in (1, 5, 10)

    def adv(pos, xsh, j):
        ops = []
        if GL > 1:
            ops.append(f"s_add_u32 s{pos}, s{pos}, 1")
            ops.append(f"s_cmp_eq_u32 s{pos}, {GL}")
            ops.append(f"s_cselect_b32 s{pos}, 0, s{pos}")
        if (j + 1) % GL == 0:
            ops.append(f"s_add_u32 s{xsh}, s{xsh}, {GL}")
            ops.append(f"s_cmp_eq_u32 s{xsh}, 10")
            ops.append(f"s_cselect_b32 s{xsh}, 0, s{xsh}")
        return ops
    if CFG["gu_map"] == 1:
        a(f"s_mul_i32 s{S_T1}, s{S_IDX}, 171")
        a(f"s_lshr_b32 s{S_T1}, s{S_T1}, 9")
        a(f"s_mul_i32 s{S_T2}, s{S_T1}, 3")
        a(f"s_sub_u32 s{S_T2}, s{S_IDX}, s{S_T2}")
        a(f"s_mul_i32 s{S_POS}, s{S_T1}, {GL*64}")
        a(f"s_add_u32 s{S_POS}, s{S_POS}, 100")
        a(f"s_lshr_b32 s{S_POS}, s{S_POS}, 8")
        a(f"s_mul_i32 s{S_T3}, s{S_T2}, {(GL*256)//3}")
        a(f"s_add_u32 s{S_T3}, s{S_T3}, 128")
        a(f"s_lshr_b32 s{S_T3}, s{S_T3}, 8")
        a(f"s_add_u32 s{S_POS}, s{S_POS}, s{S_T3}")
        a(f"s_and_b32 s{S_T3}, s{S_XCD}, 1")
        a(f"s_lshl_b32 s{S_T3}, s{S_T3}, 2")
        a(f"s_add_u32 s{S_T4}, s{S_T3}, s{S_T1}")
        a(f"s_lshr_b32 s{S_T3}, s{S_XCD}, 1")
        a(f"s_mul_i32 s{S_T3}, s{S_T3}, 3")
        a(f"s_add_u32 s{S_T2}, s{S_T2}, s{S_T3}")
    else:
        a(f"s_mov_b32 s{S_T4}, s{S_XCD}")
        a(f"s_mov_b32 s{S_T2}, s{S_IDX}")
        a(f"s_mul_i32 s{S_POS}, s{S_IDX}, {(GL*256)//12}")
        a(f"s_lshr_b32 s{S_POS}, s{S_POS}, 8")
    a(f"s_cmp_ge_u32 s{S_POS}, {GL}")
    a(f"s_cselect_b32 s{S_T3}, {GL}, 0")
    a(f"s_sub_u32 s{S_POS}, s{S_POS}, s{S_T3}")
    if GL == 1:
        a(f"s_mov_b32 s{S_POS}, 0")
    if CFG["gu_xsh"] and GL == 5:
        a(f"s_lshr_b32 s{S_XSH}, s{S_XCD}, 1")
        a(f"s_xor_b32 s{S_XSH}, s{S_XSH}, s{S_XCD}")
        a(f"s_and_b32 s{S_XSH}, s{S_XSH}, 1")
        a(f"s_mul_i32 s{S_XSH}, s{S_XSH}, 5")
    else:
        a(f"s_mov_b32 s{S_XSH}, 0")
    a(f"s_mov_b32 s{S_POSB}, s{S_POS}")
    a(f"s_mov_b32 s{S_XSHB}, s{S_XSH}")
    a(f"s_add_u32 s{S_KA}, s{S_POS}, s{S_XSH}")
    a(f"s_mul_i32 s{S_KB}, s{S_KA}, {64*3072}")
    a(f"s_lshl_b32 s{S_KA}, s{S_KA}, 7")
    srd(a, R_WG, P_WG, P_WG + 1, 1966080)
    srd(a, R_WU, P_WU, P_WU + 1, 1966080)
    a(f"s_lshr_b32 s{S_T0}, s{S_W}, 1")
    a(f"s_and_b32 s{S_T1}, s{S_W}, 1")
    a(f"v_lshrrev_b32 v{T}, 4, v{V_LANE}")
    a(f"s_lshl_b32 s{S_T5}, s{S_W}, 2")
    a(f"v_add_u32 v{T+1}, s{S_T5}, v{T}")
    a(f"v_mul_u32_u24 v{V_BS}, 3072, v{T+1}")
    a(f"s_lshl_b32 s{S_T5}, s{S_T0}, 2")
    a(f"v_or_b32 v{T}, s{S_T5}, v{T}")
    a(f"v_bfe_u32 v{T+1}, v{V_LANE}, 1, 3")
    a(f"v_xor_b32 v{T}, v{T}, v{T+1}")
    a(f"v_lshl_add_u32 v{V_BS}, v{T}, 5, v{V_BS}")
    a(f"v_and_b32 v{T}, 1, v{V_LANE}")
    a(f"v_lshl_add_u32 v{V_BS}, v{T}, 4, v{V_BS}")
    a(f"s_lshl_b32 s{S_T5}, s{S_T2}, 8")
    a(f"v_add_u32 v{V_BS}, s{S_T5}, v{V_BS}")
    a(f"v_add_u32 v{V_BS+1}, {16*3072}, v{V_BS}")
    a(f"v_lshrrev_b32 v{T}, 3, v{V_LANE}")
    a(f"s_lshl_b32 s{S_T5}, s{S_W}, 3")
    a(f"s_lshl_b32 s{S_O0}, s{S_T4}, 8")
    a(f"s_add_u32 s{S_T5}, s{S_T5}, s{S_O0}")
    a(f"v_add_u32 v{T}, s{S_T5}, v{T}")
    a(f"v_mul_u32_u24 v{T}, 1280, v{T}")
    a(f"v_lshrrev_b32 v{T+1}, 4, v{V_LANE}")
    a(f"s_lshl_b32 s{S_T5}, s{S_T1}, 2")
    a(f"v_add_u32 v{T+1}, s{S_T5}, v{T+1}")
    a(f"v_and_b32 v{V_AS}, 7, v{V_LANE}")
    a(f"v_xor_b32 v{T+1}, v{T+1}, v{V_AS}")
    a(f"v_lshl_add_u32 v{V_AS}, v{T+1}, 4, v{T}")
    for i in range(1, 8):
        a(f"v_add_u32 v{V_AS+i}, {i*32*1280}, v{V_AS}")

    def dmaA(j, half):
        ops = []
        slot = (j % NA) * A_SLOT
        for i in range(half * 4, half * 4 + 4):
            ops.append(f"s_add_u32 m0, s{S_WB}, {slot + i*4096}")
            ops.append(("dma", f"buffer_load_dwordx4 v{V_AS+i}, s[{R_X}:{R_X+3}], s{S_KA} offen{CFG['xa_flag']} lds", f"A{j}"))
        if half == 1:
            ops += adv(S_POS, S_XSH, j)
            ops.append(f"s_add_u32 s{S_KA}, s{S_POS}, s{S_XSH}")
            ops.append(f"s_lshl_b32 s{S_KA}, s{S_KA}, 7")
        return ops

    def dmaB(s):
        ops = []
        slot = B_BASE + (s % NB) * B_SLOT
        for up in range(2):
            for i in range(2):
                ops.append(f"s_add_u32 m0, s{S_WB}, {slot + up*8192 + i*4096}")
                rr = R_WU if up else R_WG
                ops.append(("dma", f"buffer_load_dwordx4 v{V_BS+i}, s[{rr}:{rr+3}], s{S_KB} offen{CFG['w_flag']} lds", f"B{s}"))
        if s % 2 == 0:
            ops.append(f"s_add_u32 s{S_KB}, s{S_KB}, {32*3072}")
        else:
            ops += adv(S_POSB, S_XSHB, s // 2)
            ops.append(f"s_add_u32 s{S_KB}, s{S_POSB}, s{S_XSHB}")
            ops.append(f"s_mul_i32 s{S_KB}, s{S_KB}, {64*3072}")
        return ops

    q = DmaQ(vm)
    order = []
    for s in range(NS):
        order.append(("B", s))
        if s % 2 == 0:
            order.append(("A", s // 2, 0))
            order.append(("A", s // 2, 1))
    items = []
    for o in order:
        if o[0] == "B":
            fa = -1 if o[1] < NB else o[1] - NB
            items.append((fa, o[1], dmaB(o[1])))
        else:
            fa = -1 if o[1] < NA else 2 * (o[1] - NA) + 1
            items.append((fa + (o[2] if fa >= 0 else 0), 2 * o[1], dmaA(o[1], o[2])))
    items.sort(key=lambda t: (t[0], t[1]))
    for fa, dl, ops in items:
        q.add(fa, ops)
    for o in q.take(-1, 16):
        a(o)
    stamp(a, 2)

    a(f"s_lshl_b32 s{S_T4}, s{S_T4}, 2")
    a(f"s_lshl_b32 s{S_T3}, s{S_T0}, 1")
    a(f"s_add_u32 s{S_T4}, s{S_T4}, s{S_T3}")
    a(f"s_mul_i32 s{S_T4}, s{S_T4}, 88")
    a(f"s_add_u32 s{S_T4}, s{S_T4}, 40")
    a(f"s_lshl_b32 s{S_T2}, s{S_T2}, 2")
    a(f"s_add_u32 s{S_T4}, s{S_T4}, s{S_T2}")
    a(f"s_lshl_b32 s{S_T2}, s{S_T1}, 1")
    a(f"s_add_u32 s{S_T4}, s{S_T4}, s{S_T2}")
    a(f"s_lshl_b32 s{S_O0}, s{S_T4}, 12")
    a(f"v_and_b32 v{T}, 15, v{V_LANE}")
    a(f"s_lshl_b32 s{S_T2}, s{S_T0}, 7")
    a(f"v_add_u32 v{T}, s{S_T2}, v{T}")
    a(f"v_lshlrev_b32 v{T}, 7, v{T}")
    a(f"v_lshrrev_b32 v{T+1}, 4, v{V_LANE}")
    a(f"v_bfe_u32 v{V_AR}, v{V_LANE}, 1, 3")
    a(f"v_xor_b32 v{T+1}, v{T+1}, v{V_AR}")
    a(f"v_lshl_add_u32 v{V_AR}, v{T+1}, 4, v{T}")
    a(f"v_xor_b32 v{V_AR+1}, 64, v{V_AR}")
    a(f"v_add_u32 v{V_AR+2}, 65536, v{V_AR}")
    a(f"v_add_u32 v{V_AR+3}, 65536, v{V_AR+1}")
    a(f"v_lshrrev_b32 v{T}, 4, v{V_LANE}")
    a(f"v_bfe_u32 v{T+1}, v{V_LANE}, 2, 2")
    a(f"v_lshl_add_u32 v{V_BR}, v{T}, 3, v{T+1}")
    a(f"v_lshlrev_b32 v{V_BR}, 8, v{V_BR}")
    a(f"v_and_b32 v{T}, 1, v{T}")
    a(f"v_lshl_or_b32 v{T}, v{T}, 2, v{T+1}")
    a(f"s_lshl_b32 s{S_T2}, s{S_T1}, 2")
    a(f"v_xor_b32 v{T}, s{S_T2}, v{T}")
    a(f"v_lshl_add_u32 v{V_BR}, v{T}, 5, v{V_BR}")
    a(f"v_and_b32 v{T}, 3, v{V_LANE}")
    a(f"v_lshl_add_u32 v{V_BR}, v{T}, 3, v{V_BR}")
    a(f"v_add_u32 v{V_BR}, {B_BASE}, v{V_BR}")
    for nb in range(1, 4):
        a(f"v_xor_b32 v{V_BR+nb}, {nb*32}, v{V_BR}")
    a(f"v_lshlrev_b32 v{T}, 4, v{V_LANE}")
    a(f"s_mov_b32 s{S_T0}, 0xbfb8aa3b")
    a(f"s_mov_b32 s{S_T1}, 0xbfb8aa3b")
    assert S_T0 % 2 == 0 and S_T1 == S_T0 + 1

    def rd_ops(s):
        j, ss = s // 2, s % 2
        fb = (s % 2) * 64
        ops = []
        for i in range(8):
            up, nb = i // 4, i % 4
            imm = (s % NB) * B_SLOT + up * 8192
            r = fb + 32 + i * 4
            ops.append(f"ds_read_b64_tr_b16 a[{r}:{r+1}], v{V_BR+nb} offset:{imm}")
            ops.append(f"ds_read_b64_tr_b16 a[{r+2}:{r+3}], v{V_BR+nb} offset:{imm+1024}")
            off = (j % NA) * A_SLOT + i * 2048
            wdw, imm = off // 65536, off % 65536
            r = fb + i * 4
            ops.append(f"ds_read_b128 a[{r}:{r+3}], v{V_AR+2*wdw+ss} offset:{imm}")
        return ops

    def mfma_row(s, mb):
        fb = (s % 2) * 64
        mf = []
        for nb8 in range(8):
            k, c = acc_reg(mb, nb8)
            d = f"{k}[{c}:{c+3}]"
            src_c = "0" if s == 0 else d
            mf.append(f"v_mfma_f32_16x16x32_bf16 {d}, a[{fb+32+nb8*4}:{fb+32+nb8*4+3}], a[{fb+mb*4}:{fb+mb*4+3}], {src_c}")
        return mf

    U_TMP = 24

    def epi_ops(mb, packed):
        ops = []
        for p in range(2):
            gs, us = [], []
            for nb in (2 * p, 2 * p + 1):
                kg, cg = acc_reg(mb, nb)
                ku, cu = acc_reg(mb, nb + 4)
                assert kg == "v"
                gs += [cg + r for r in range(4)]
                if ku == "a":
                    for r in range(4):
                        t = U_TMP + (nb % 2) * 4 + r
                        ops.append(f"v_accvgpr_read_b32 v{t}, a{cu+r}")
                        us.append(t)
                else:
                    us += [cu + r for r in range(4)]
            if packed:
                for g in gs[::2]:
                    ops.append(f"v_pk_mul_f32 v[{g}:{g+1}], v[{g}:{g+1}], s[{S_T0}:{S_T1}]")
            else:
                for g in gs:
                    ops.append(f"v_mul_f32 v{g}, s{S_T0}, v{g}")
            for g in gs:
                ops.append(f"v_exp_f32 v{g}, v{g}")
            if packed:
                for g in gs[::2]:
                    ops.append(f"v_pk_add_f32 v[{g}:{g+1}], v[{g}:{g+1}], 1.0 op_sel_hi:[1,0]")
            else:
                for g in gs:
                    ops.append(f"v_add_f32 v{g}, 1.0, v{g}")
            for g in gs:
                ops.append(f"v_rcp_f32 v{g}, v{g}")
            if packed:
                for g, u in list(zip(gs, us))[::2]:
                    ops.append(f"v_pk_mul_f32 v[{g}:{g+1}], v[{g}:{g+1}], v[{u}:{u+1}]")
            else:
                for g, u in zip(gs, us):
                    ops.append(f"v_mul_f32 v{g}, v{g}, v{u}")
            o = gs[0]
            assert o % 4 == 0
            ops.append(f"v_cvt_pk_bf16_f32 v{o}, v{gs[0]}, v{gs[1]}")
            ops.append(f"v_cvt_pk_bf16_f32 v{o+1}, v{gs[2]}, v{gs[3]}")
            ops.append(f"v_cvt_pk_bf16_f32 v{o+2}, v{gs[4]}, v{gs[5]}")
            ops.append(f"v_cvt_pk_bf16_f32 v{o+3}, v{gs[6]}, v{gs[7]}")
            so = (mb >> 2) * 88 * 4096 + p * 4096
            ops.append(f"s_add_u32 s{S_O1}, s{S_O0}, {so}")
            ops.append(f"buffer_store_dwordx4 v[{o}:{o+3}], v{T}, s[{R_WS}:{R_WS+3}], s{S_O1} offen offset:{(mb&3)*1024}{CFG['st_flag']}")
        return ops

    stamp(a, 3)
    a(f"s_waitcnt vmcnt({vm.need(['A0','B0'])})")
    a("s_barrier")
    stamp(a, 4)
    for o in rd_ops(0):
        a(o)
    tail = CFG["gu_tail"]
    nmain = NS - 2 if tail else NS
    for s in range(nmain):
        mf = []
        for mb in range(8):
            mf += mfma_row(s, mb)
        a("s_waitcnt lgkmcnt(0)")
        sync, fill, n0 = [], [], 0
        if s + 1 < NS:
            n0 = CFG["gu_n0"]
            need = [f"B{s+1}", f"A{(s+1)//2}"]
            sync = [f"s_waitcnt vmcnt({vm.need(need)})", "s_barrier"]
            fill += rd_ops(s + 1)
        fill += q.take(s, CFG["gu_rate"])
        interleave(a, mf, n0, sync, fill)
    assert not q.q
    if tail:
        s = NS - 2
        a("s_waitcnt lgkmcnt(0)")
        sync = [f"s_waitcnt vmcnt({vm.need([f'B{s+1}', f'A{(s+1)//2}'])})", "s_barrier"]
        LEAD = 3
        mf = []
        for mb in range(LEAD):
            mf += mfma_row(s, mb)
        interleave(a, mf, 2, sync, rd_ops(s + 1), last=len(mf) - 6)
        a("s_waitcnt lgkmcnt(0)")
        stamp(a, 7)
        rows = [(s + 1, mb) for mb in range(LEAD)]
        for mb in range(LEAD, 8):
            rows += [(s, mb), (s + 1, mb)]
        pending = []
        per_gap = CFG.get("gu_pergap", 2)
        for (ss_, mb) in rows:
            mf = mfma_row(ss_, mb)
            for i, m in enumerate(mf):
                a(m)
                for _ in range(per_gap):
                    if pending and (pending[0][0] <= 0):
                        a(pending.pop(0)[1])
                pending = [(d - 1, o) for d, o in pending]
            if ss_ == s + 1:
                done_mb = mb
                pending += [(8, ("EPI", done_mb))]
                exp = []
                for d, o in pending:
                    if isinstance(o, tuple):
                        exp += [(d, x) for x in epi_ops(o[1], False)]
                    else:
                        exp.append((d, o))
                pending = exp
        a("s_nop 7")
        for d, o in pending:
            a(o)
    else:
        stamp(a, 7)
        a("s_nop 7")
        for mb in range(8):
            for o in epi_ops(mb, True):
                a(o)
    if CFG["stamps"]:
        a("s_waitcnt vmcnt(0)")
        stamp(a, 8)
        stamps_out(a, 9, 0)
    a("s_endpgm")


def gen_k1(a):
    a(".p2align 8")
    a(f".globl k1_kernel")
    a(".type k1_kernel,@function")
    a.label("k1_kernel")
    a("s_cmp_ge_u32 s2, 256")
    a("s_cbranch_scc1 L_k1_end")
    stamp(a, 0)
    a("s_load_dwordx16 s[16:31], s[0:1], 0")
    a("s_load_dwordx4 s[32:35], s[0:1], 64")
    a("s_load_dwordx2 s[36:37], s[0:1], 96")
    a(f"v_and_b32 v{V_LANE}, 63, v0")
    a("v_lshrrev_b32 v2, 6, v0")
    a("s_nop 0")
    a(f"v_readfirstlane_b32 s{S_W}, v2")
    a(f"s_and_b32 s{S_XCD}, s2, 7")
    a(f"s_lshr_b32 s{S_IDX}, s2, 3")
    a("s_nop 2")
    a(f"s_lshl_b32 s{S_WB}, s{S_W}, 10")
    a("s_waitcnt lgkmcnt(0)")
    stamp(a, 1)
    srd(a, R_X, P_X, P_X + 1, 2621440)
    srd(a, R_WS, P_WS, P_WS + 1, WS_SIZE)
    srd(a, R_GW, P_GW, P_GW + 1, 1280)
    a(f"s_cmp_lt_u32 s{S_IDX}, 12")
    a("s_cbranch_scc1 L_gu_jump")
    gen_pq(a)
    a.label("L_k1_end")
    a("s_endpgm")
    a.label("L_gu_jump")
    gen_gu(a)


def gen_k2(a):
    D = CFG["k2_D"]
    NBUF = D + 1
    assert NBUF * 36 <= 256
    ACC = 16
    RB = 96
    V_L16, V_L16B, V_G, V_O, T = 2, 3, 4, 6, 8
    R_OUT = 44
    S_A, S_B = 69, 70
    a(".p2align 8")
    a(f".globl k2_kernel")
    a(".type k2_kernel,@function")
    a.label("k2_kernel")
    a("s_cmp_ge_u32 s2, 256")
    a("s_cbranch_scc1 L_k2_end")
    stamp(a, 0)
    a("s_load_dwordx2 s[16:17], s[0:1], 80")
    a("s_load_dwordx2 s[36:37], s[0:1], 96")
    a(f"v_and_b32 v{V_LANE}, 63, v0")
    a("v_lshrrev_b32 v2, 6, v0")
    a("s_nop 0")
    a(f"v_readfirstlane_b32 s{S_W}, v2")
    a(f"s_and_b32 s{S_XCD}, s2, 7")
    a(f"s_lshr_b32 s{S_IDX}, s2, 3")
    if CFG["k2_map"] == 1:
        a(f"s_lshr_b32 s{S_T0}, s{S_IDX}, 3")
        a(f"s_lshl_b32 s{S_T1}, s{S_XCD}, 2")
        a(f"s_add_u32 s{S_T0}, s{S_T0}, s{S_T1}")
        a(f"s_and_b32 s{S_T1}, s{S_IDX}, 7")
    else:
        a(f"s_lshr_b32 s{S_T0}, s{S_IDX}, 2")
        a(f"s_lshr_b32 s{S_T1}, s{S_XCD}, 1")
        a(f"s_lshl_b32 s{S_T1}, s{S_T1}, 3")
        a(f"s_add_u32 s{S_T0}, s{S_T0}, s{S_T1}")
        a(f"s_and_b32 s{S_T1}, s{S_IDX}, 3")
        a(f"s_and_b32 s{S_T2}, s{S_XCD}, 1")
        a(f"s_lshl_b32 s{S_T2}, s{S_T2}, 2")
        a(f"s_add_u32 s{S_T1}, s{S_T1}, s{S_T2}")
    a(f"s_mul_i32 s{S_T2}, s{S_W}, 20")
    a(f"s_cmp_eq_u32 s{S_W}, 3")
    a(f"s_cselect_b32 s{S_T2}, 64, s{S_T2}")
    a(f"s_mul_i32 s{S_A}, s{S_T0}, 88")
    a(f"s_add_u32 s{S_A}, s{S_A}, s{S_T2}")
    a(f"s_lshl_b32 s{S_A}, s{S_A}, 12")
    a(f"s_mul_i32 s{S_B}, s{S_T1}, 88")
    a(f"s_add_u32 s{S_B}, s{S_B}, s{S_T2}")
    a(f"s_mul_i32 s{S_B}, s{S_B}, 5120")
    a(f"s_add_u32 s{S_B}, s{S_B}, {WS_BPACK}")
    a(f"v_lshlrev_b32 v{V_L16}, 4, v{V_LANE}")
    a(f"v_add_u32 v{V_L16B}, 4096, v{V_L16}")
    a(f"s_lshl_b32 s{S_T3}, s{S_T0}, 6")
    a(f"s_lshl_b32 s{S_T4}, s{S_W}, 4")
    a(f"s_add_u32 s{S_T3}, s{S_T3}, s{S_T4}")
    a(f"v_and_b32 v{T}, 15, v{V_LANE}")
    a(f"v_add_u32 v{T}, s{S_T3}, v{T}")
    a(f"v_lshlrev_b32 v{T+1}, 3, v{T}")
    a(f"v_add_u32 v{T+1}, {WS_G}, v{T+1}")
    a(f"v_mul_u32_u24 v{V_O}, 1280, v{T}")
    a(f"v_lshrrev_b32 v{T+2}, 4, v{V_LANE}")
    a(f"v_lshl_add_u32 v{V_O}, v{T+2}, 3, v{V_O}")
    a(f"s_mul_i32 s{S_T4}, s{S_T1}, 160")
    a(f"v_add_u32 v{V_O}, s{S_T4}, v{V_O}")
    a("s_waitcnt lgkmcnt(0)")
    srd(a, R_WS, P_WS, P_WS + 1, WS_SIZE)
    srd(a, R_OUT, 16, 17, 2621440)
    a(f"buffer_load_dwordx2 v[{V_G}:{V_G+1}], v{T+1}, s[{R_WS}:{R_WS+3}], 0 offen")
    a(f"s_cmp_ge_u32 s{S_W}, 2")
    a("s_cbranch_scc1 L_k2_n24")

    def loads(kb):
        fb = (kb % NBUF) * 36
        ops = []
        for eb in range(5):
            r = fb + 16 + eb * 4
            if eb < 4:
                ops.append(f"buffer_load_dwordx4 a[{r}:{r+3}], v{V_L16}, s[{R_WS}:{R_WS+3}], s{S_B} offen offset:{eb*1024}{CFG['k2b_flag']}")
            else:
                ops.append(f"buffer_load_dwordx4 a[{r}:{r+3}], v{V_L16B}, s[{R_WS}:{R_WS+3}], s{S_B} offen{CFG['k2b_flag']}")
        for mb in range(4):
            r = fb + mb * 4
            ops.append(f"buffer_load_dwordx4 a[{r}:{r+3}], v{V_L16}, s[{R_WS}:{R_WS+3}], s{S_A} offen offset:{mb*1024}{CFG['k2a_flag']}")
        ops.append(f"s_add_u32 s{S_A}, s{S_A}, 4096")
        ops.append(f"s_add_u32 s{S_B}, s{S_B}, 5120")
        return ops

    def body(n):
        for kb in range(D):
            for o in loads(kb):
                a(o)
        for kb in range(n):
            fb = (kb % NBUF) * 36
            outstanding_after = min(D - 1, n - 1 - kb) * 9
            a(f"s_waitcnt vmcnt({outstanding_after})")
            if kb == 0:
                stamp(a, 1)
            mf = []
            for mb in range(4):
                for eb in range(5):
                    c = ACC + (mb * 5 + eb) * 4
                    src_c = "0" if kb == 0 else f"v[{c}:{c+3}]"
                    mf.append(f"v_mfma_f32_16x16x32_bf16 v[{c}:{c+3}], a[{fb+16+eb*4}:{fb+16+eb*4+3}], a[{fb+mb*4}:{fb+mb*4+3}], {src_c}")
            fill = loads(kb + D) if kb + D < n else []
            interleave(a, mf, 0, [], fill, last=12)

    body(20)
    a("s_branch L_k2_red")
    a.label("L_k2_n24")
    body(24)
    a.label("L_k2_red")
    stamp(a, 2)
    a("s_nop 7")
    a(f"s_mul_i32 s{S_T0}, s{S_W}, 20480")
    a(f"v_add_u32 v{T}, s{S_T0}, v{V_L16}")
    for mb in range(4):
        for eb in range(5):
            c = ACC + (mb * 5 + eb) * 4
            a(f"ds_write_b128 v{T}, v[{c}:{c+3}] offset:{mb*5120+eb*1024}")
    a(f"s_mul_i32 s{S_T0}, s{S_W}, 5120")
    a(f"v_add_u32 v{T+1}, s{S_T0}, v{V_L16}")
    a(f"v_add_u32 v{T+2}, 40960, v{T+1}")
    a("s_waitcnt lgkmcnt(0)")
    a("s_barrier")
    for eb in range(5):
        for sw in range(4):
            r = RB + (eb * 4 + sw) * 4
            a(f"ds_read_b128 v[{r}:{r+3}], v{T+1+sw//2} offset:{(sw%2)*20480+eb*1024}")
    for eb in range(5):
        a(f"s_waitcnt lgkmcnt({min(15,(4-eb)*4)})")
        r = RB + eb * 16
        for i in range(4):
            a(f"v_sub_f32 v{r+i}, v{r+i}, v{r+4+i}")
            a(f"v_add_f32 v{r+8+i}, v{r+8+i}, v{r+12+i}")
        for i in range(4):
            a(f"v_mul_f32 v{r+i}, v{r+i}, v{V_G}")
        for i in range(4):
            a(f"v_fmac_f32 v{r+i}, v{r+8+i}, v{V_G+1}")
        a(f"v_cvt_pk_bf16_f32 v{r+4}, v{r}, v{r+1}")
        a(f"v_cvt_pk_bf16_f32 v{r+5}, v{r+2}, v{r+3}")
        a(f"buffer_store_dwordx2 v[{r+4}:{r+5}], v{V_O}, s[{R_OUT}:{R_OUT+3}], 0 offen offset:{eb*32}")
    if CFG["stamps"]:
        a("s_waitcnt vmcnt(0)")
        stamp(a, 3)
        stamps_out(a, 4, 1)
    a.label("L_k2_end")
    a("s_endpgm")


def kd(name, nv, acc_off):
    return f""".amdhsa_kernel {name}
  .amdhsa_next_free_vgpr {nv}
  .amdhsa_next_free_sgpr 102
  .amdhsa_accum_offset {acc_off}
  .amdhsa_group_segment_fixed_size 0
  .amdhsa_kernarg_size 104
  .amdhsa_user_sgpr_count 2
  .amdhsa_user_sgpr_kernarg_segment_ptr 1
  .amdhsa_system_sgpr_workgroup_id_x 1
.end_amdhsa_kernel
"""


def main(out, **kw):
    CFG.update(kw)
    a = Asm()
    hdr = f"""; gated_mix FNet + GLU, generated by gen.py  cfg={CFG}
; @launch kernel=k1_kernel grid=(256,1,1) block=(256,1,1) lds=163840
; @launch kernel=k2_kernel grid=(256,1,1) block=(256,1,1) lds=81920
.amdgcn_target "amdgcn-amd-amdhsa--gfx950"
.text
"""
    gen_k1(a)
    gen_k2(a)
    txt = hdr + a.text()
    txt += '.section .rodata,"a"\n.p2align 6\n' + kd("k1_kernel", 512, 256) + ".p2align 6\n" + kd("k2_kernel", 512, 256)
    open(out, "w").write(txt)
    print("wrote", out, len(txt), "bytes", len(a.l), "lines")


if __name__ == "__main__":
    out = sys.argv[1] if len(sys.argv) > 1 else f"cdna_kernels/{NAME}.s"
    kw = {}
    for x in sys.argv[2:]:
        k, v = x.split("=")
        kw[k] = int(v) if v.lstrip("-").isdigit() else (" " + v.replace("+", " ") if v else "")
    main(out, **kw)
```
